```python
import torch

def _softmax(x, axis=-1):
    return torch.softmax(x, dim=axis)
def _gelu(x):
    return torch.nn.functional.gelu(x, approximate="tanh")
def _silu(x):
    return torch.nn.functional.silu(x)
def _sigmoid(x):
    return torch.sigmoid(x)
def _layernorm(x, axis=-1, eps=1e-5):
    m = x.mean(dim=axis, keepdim=True)
    v = x.var(dim=axis, keepdim=True, unbiased=False)
    return (x - m) / torch.sqrt(v + eps)
def _scatter_add(tgt, idx, src, axis=0):
    return tgt.clone().index_add_(axis, idx, src)
def _segment_sum(src, seg, n):
    out = torch.zeros((n,) + src.shape[1:], dtype=src.dtype)
    return out.index_add_(0, seg, src)
def _pad(x, pw):
    flat = tuple(v for pair in reversed(pw) for v in pair)
    return torch.nn.functional.pad(x, flat)

kernel_name = 'recurrent_scan__sliding_block__glu_gated_swiglu__prompt'

def setup_inputs():

    _w = (lambda a: (lambda t: t.to(torch.bfloat16) if t.is_floating_point() else t)(torch.as_tensor(a)))
    def _A_setup():
        B, S, D = 1, 2048, 448
        return {
            "x": _w((lambda *s: torch.randn(*s, dtype=torch.bfloat16) * 0.05)(B, S, D)),
            "wqkv": _w((lambda *s: torch.randn(*s, dtype=torch.bfloat16) * 0.2)(D, 3 * D)),
            "wo": _w((lambda *s: torch.randn(*s, dtype=torch.bfloat16) * 0.2)(D, D)),
        }
    _A_in = _A_setup()

    def _B_setup():
        B, S, D, F = 1, 2048, 448, 1792
        return {
            "x": _w((lambda *s: torch.randn(*s, dtype=torch.bfloat16) * 0.05)(B, S, D)),
            "w1": _w((lambda *s: torch.randn(*s, dtype=torch.bfloat16) * 0.1)(D, F) * (2.0 / D) ** 0.5),
            "w3": _w((lambda *s: torch.randn(*s, dtype=torch.bfloat16) * 0.1)(D, F) * (2.0 / D) ** 0.5),
            "w2": _w((lambda *s: torch.randn(*s, dtype=torch.bfloat16) * 0.1)(F, D) * (2.0 / F) ** 0.5),
        }
    _B_in = _B_setup()

    return {
        "A_x": _A_in["x"],
        "A_wqkv": _A_in["wqkv"],
        "A_wo": _A_in["wo"],
        "B_x": _B_in["x"],
        "B_w1": _B_in["w1"],
        "B_w3": _B_in["w3"],
        "B_w2": _B_in["w2"],
    }

def reference(A_x, A_wqkv, A_wo, B_x, B_w1, B_w3, B_w2):
    def _A_ref(x, wqkv, wo):
        B, S, D = x.shape
        H = 16; Dh = D // H; W = 256
        qkv = (lambda x, *d: x.permute(*d))((x @ wqkv).reshape(B, S, 3, H, Dh), 2, 0, 3, 1, 4)
        q, k, v = qkv[0], qkv[1], qkv[2]
        scores = torch.einsum("bhqd,bhkd->bhqk", q, k) * (Dh ** -0.5)
        idx = torch.arange(S)
        mask = (idx[:, None] - idx[None, :] >= 0) & (idx[:, None] - idx[None, :] < W)
        scores = torch.where(mask[None, None], scores, -1e9)
        p = _softmax(scores, axis=-1)
        o = torch.einsum("bhqk,bhkd->bhqd", p, v)
        return (lambda x, *d: x.permute(*d))(o, 0, 2, 1, 3).reshape(B, S, D) @ wo

    def _B_ref(x, w1, w3, w2):
        gate = torch.einsum("bsd,df->bsf", x, w1)
        up = torch.einsum("bsd,df->bsf", x, w3)
        h = _silu(gate) * up
        out = torch.einsum("bsf,fd->bsd", h, w2)
        return out

    x = A_x
    xn = _layernorm(x, axis=-1)
    s = _A_ref(xn, A_wqkv, A_wo)
    g = _silu(_B_ref(xn, B_w1, B_w3, B_w2))
    return x + s * g
```

```python
import re

REG = re.compile(r"^([vas])(\d+)$|^([vas])\[(\d+):(\d+)\]$")
TRANS = ("v_exp_f32", "v_rcp_f32", "v_rsq_f32", "v_log_f32", "v_sqrt_f32")
NODST_S = ("s_cmp", "s_waitcnt", "s_barrier", "s_nop", "s_branch", "s_cbranch", "s_endpgm", "s_setprio",
           "s_bitcmp", "s_sleep")


def regs_of(tok):
    tok = tok.strip().lstrip("-").strip("|")
    m = REG.match(tok)
    if m:
        if m.group(1):
            return [(m.group(1), int(m.group(2)))]
        return [(m.group(3), k) for k in range(int(m.group(4)), int(m.group(5)) + 1)]
    if tok in ("vcc",):
        return [("s", 106), ("s", 107)]
    if tok == "vcc_lo":
        return [("s", 106)]
    if tok == "vcc_hi":
        return [("s", 107)]
    if tok == "m0":
        return [("s", 124)]
    if tok == "exec":
        return [("s", 126), ("s", 127)]
    return []


class Ins:
    def __init__(self, text, tag=None, opt=False, vm=None, lg=None, force=False):
        self.text = text
        self.tag = tag
        self.opt = opt
        self.vm, self.lg = vm, lg
        self.force = force
        self.parse()

    def parse(self):
        t = self.text
        self.rd, self.wr = set(), set()
        self.mA = self.mB = self.mC = self.mD = ()
        self.passes = 0
        self.wide_store = False
        self.lds_dma = False
        if t == "WAIT":
            self.kind, self.cost = "wait", 4
            return
        if t.endswith(":") or t.startswith("."):
            self.kind, self.cost = "label", 0
            return
        mn, _, rest = t.partition(" ")
        self.mn = mn
        parts = [p.strip() for p in rest.split(",")] if rest else []
        if parts:
            last = parts[-1].split()
            parts[-1] = last[0]
            mods = last[1:]
        else:
            mods = []
        ops = [regs_of(p) for p in parts]
        flat = lambda L: set(r for o in L for r in o)
        if mn.startswith("v_mfma"):
            self.kind = "mfma"
            self.passes = 8 if "32x32x16" in mn else (4 if "16x16x32" in mn else 2)
            self.cost = 8 if self.passes > 2 else 4
            self.mD, self.mA, self.mB, self.mC = ops[0], ops[1], ops[2], ops[3]
            self.wr, self.rd = set(ops[0]), flat(ops[1:])
        elif mn.startswith("v_"):
            base = mn.replace("_e32", "").replace("_e64", "")
            self.kind = "valu"
            self.trans = base in TRANS
            self.cost = 8 if self.trans or base.startswith("v_permlane") else 4
            if base.startswith("v_permlane"):
                self.wr = self.rd = flat(ops)
            elif base == "v_nop":
                pass
            else:
                self.wr, self.rd = set(ops[0]), flat(ops[1:])
                if base.startswith("v_fmac") or base.startswith("v_writelane"):
                    self.rd = self.rd | self.wr
        elif mn.startswith("ds_"):
            self.kind = "ds"
            if mn.startswith("ds_read"):
                self.wr, self.rd = set(ops[0]), flat(ops[1:])
                self.cost = 4
            else:
                self.rd = flat(ops)
                self.cost = 20 if "b128" in mn else 12
        elif mn.startswith("buffer_") or mn.startswith("global_"):
            self.kind, self.cost = "vmem", 8
            if "lds" in mods:
                self.lds_dma = True
                self.rd = flat(ops) | {("s", 124)}
            elif "_load" in mn:
                self.wr, self.rd = set(ops[0]), flat(ops[1:])
            else:
                self.rd = flat(ops)
                if "x4" in mn or "x3" in mn:
                    self.wide_store = True
                    self.sdata = set(ops[0])
        elif mn.startswith("s_load") or mn.startswith("s_memtime") or mn.startswith("s_memrealtime"):
            self.kind, self.cost = "smem", 4
            self.wr, self.rd = set(ops[0]), flat(ops[1:])
        elif mn.startswith("s_"):
            self.kind, self.cost = "salu", 4
            if mn == "s_barrier":
                self.kind, self.cost = "bar", 8
            elif mn == "s_nop":
                self.cost = 4 * (int(parts[0]) + 1)
            if any(mn.startswith(p) for p in NODST_S):
                self.rd = flat(ops)
            else:
                self.wr, self.rd = set(ops[0]), flat(ops[1:])
                if mn.startswith("s_and_saveexec") or mn.startswith("s_or_saveexec"):
                    self.wr |= {("s", 126), ("s", 127)}
        else:
            raise ValueError("unknown instruction: " + t)

    def states(self):
        if self.kind == "label":
            return 0
        if self.kind == "salu" and self.mn == "s_nop":
            return int(self.text.split()[1]) + 1
        return 1

    def __repr__(self):
        return self.text


def I(text, **k):
    return Ins(text, **k)


def WAIT(vm=None, lg=None, force=False):
    return Ins("WAIT", vm=vm, lg=lg, force=force)


class Group:
    def __init__(self, items):
        self.items = [x if isinstance(x, Ins) else I(x) for x in items]
        self.cost = sum(x.cost for x in self.items)
        self.kind = "valu" if any(x.kind == "valu" for x in self.items) else self.items[0].kind
        self.first_kind = self.items[0].kind


class At:
    def __init__(self, g):
        self.g = g


def L(lines):
    return [x if isinstance(x, (Ins, Group, At)) else I(x) for x in lines]


class Timeline:
    def __init__(self, budget=24):
        self.m, self.pre, self.head, self.mem, self.tail = [], [], [], [], []
        self.budget = budget

    def add(self, ins):
        self.m.append(ins if isinstance(ins, Ins) else I(ins))
        self.pre.append([]); self.head.append([]); self.mem.append([]); self.tail.append([])
        return len(self.m) - 1

    def cost(self, g):
        c = sum(x.cost for x in self.head[g] + self.mem[g] + self.tail[g])
        if g + 1 < len(self.m):
            c += sum(x.cost for x in self.pre[g + 1])
        return c

    def nds(self, g):
        return sum(1 for x in self.mem[g] if getattr(x, "kind", "") == "ds")

    def pin(self, g, items, where="head"):
        getattr(self, where)[g].extend(L(items))

    def flow(self, stream, start, end=None, budget=None, maxds=3, name=""):
        stream = L(stream)
        end = len(self.m) - 1 if end is None else end
        b = budget or self.budget
        while True:
            place, g, in_tail = [], start, False
            extra = {}
            dsx = {}
            ok = True
            for it in stream:
                if isinstance(it, At):
                    if it.g > g:
                        g, in_tail = it.g, False
                    continue
                fk = it.first_kind if isinstance(it, Group) else it.kind
                is_valu = it.kind == "valu"
                while True:
                    if g > end:
                        ok = False
                        break
                    used = self.cost(g) + extra.get(g, 0)
                    fits = used + it.cost <= b or (used == 0)
                    if fk == "ds" and self.nds(g) + dsx.get(g, 0) >= maxds:
                        fits = False
                    if fk in ("ds", "vmem") and in_tail:
                        fits = False
                    if fits:
                        break
                    g, in_tail = g + 1, False
                if not ok:
                    break
                where = "tail" if (is_valu or in_tail) else "mem"
                in_tail = where == "tail"
                place.append((g, where, it))
                extra[g] = extra.get(g, 0) + it.cost
                if fk == "ds":
                    dsx[g] = dsx.get(g, 0) + 1
            if ok:
                break
            b += 4
            if b > 400:
                raise RuntimeError("stream does not fit: " + name)
        for g, where, it in place:
            getattr(self, where)[g].append(it)
        return (place[-1][0] if place else start), b

    def emit(self):
        out = []
        def ex(lst):
            for x in lst:
                if isinstance(x, Group):
                    out.extend(x.items)
                else:
                    out.append(x)
        for g, m in enumerate(self.m):
            ex(self.pre[g]); out.append(m); ex(self.head[g]); ex(self.mem[g]); ex(self.tail[g])
        return out

    def estimate(self):
        return sum(max(32, 8 + self.cost(g)) for g in range(len(self.m)))


def flat(seq):
    out = []
    for x in L(seq):
        if isinstance(x, Group):
            out.extend(x.items)
        elif isinstance(x, At):
            continue
        else:
            out.append(x)
    return out


def resolve_waits(code, log):
    out = []
    vm_n = lg_n = 0
    vm_done = lg_done = 0
    tags = {}
    pend = {}
    smem_out = False
    auto = 0

    def need(spec, cnt):
        if spec is None:
            return None
        if spec == 0:
            return (vm_n if cnt == "vm" else lg_n)
        lst = spec if isinstance(spec, (list, tuple)) else [spec]
        idx = 0
        for t in lst:
            c, k = tags[t]
            assert c == cnt, (t, c, cnt)
            idx = max(idx, k)
        return idx

    def emit_wait(v, l, force=False, zero_vm=False):
        nonlocal vm_done, lg_done, smem_out
        parts = []
        if v is not None and (v > vm_done or force or zero_vm):
            n = vm_n - v
            if n > 63:
                n = 63
            parts.append(f"vmcnt({n})")
            vm_done = max(vm_done, vm_n - n)
        if l is not None and (l > lg_done or force or smem_out):
            n = 0 if smem_out else min(lg_n - l, 15)
            parts.append(f"lgkmcnt({n})")
            lg_done = max(lg_done, lg_n - n)
            if n == 0:
                smem_out = False
        if parts:
            out.append(I("s_waitcnt " + " ".join(parts)))

    for ins in code:
        if ins.kind == "wait":
            emit_wait(need(ins.vm, "vm"), need(ins.lg, "lg"), ins.force, zero_vm=(ins.vm == 0))
            continue
        v = l = None
        for r in ins.rd | ins.wr:
            if r in pend:
                c, k = pend[r]
                if c == "vm" and k > vm_done:
                    v = max(v or 0, k)
                elif c == "lg" and k > lg_done:
                    l = max(l or 0, k)
        if v is not None or l is not None:
            auto += 1
            log.append(f"auto wait before: {ins.text}")
            emit_wait(v, l)
        out.append(ins)
        if ins.kind == "vmem":
            if not ins.opt:
                vm_n += 1
                assert vm_n - vm_done <= 63, "more than 63 vector-memory ops in flight at " + ins.text
            if ins.tag:
                assert not ins.opt
                tags[ins.tag] = ("vm", vm_n)
            for r in ins.wr:
                pend[r] = ("vm", vm_n)
        elif ins.kind == "smem" and ins.opt:
            pass
        elif ins.kind in ("ds", "smem"):
            lg_n += 1
            if ins.kind == "smem":
                smem_out = True
            if ins.tag:
                tags[ins.tag] = ("lg", lg_n)
            for r in ins.wr:
                pend[r] = ("lg", lg_n)
    return out, auto


def required(p, c):
    n = 0
    vg = lambda s: {r for r in s if r[0] != "s"}
    sg = lambda s: {r for r in s if r[0] == "s"}
    if p.kind == "valu":
        w = vg(p.wr)
        if c.kind == "mfma" and w & c.rd:
            n = max(n, 2)
        if c.kind == "valu":
            if c.mn.startswith("v_permlane") and w & c.rd:
                n = max(n, 2)
            if c.mn.startswith(("v_readfirstlane", "v_readlane")) and w & c.rd:
                n = max(n, 1)
            if p.trans and w & c.rd:
                n = max(n, 1)
            if sg(p.wr) & c.rd:
                n = max(n, 2)
        if c.kind == "vmem" and sg(p.wr) & c.rd:
            n = max(n, 5)
    elif p.kind == "mfma":
        tab = {2: (2, 4, 5, 5, 1), 4: (0, 6, 8, 8, 3), 8: (0, 10, 12, 12, 7)}[p.passes]
        if c.kind == "mfma":
            if p.wr & set(c.mC):
                n = max(n, tab[0] if (list(c.mC) == list(p.mD) and c.passes == p.passes) else tab[1])
            if p.wr & (set(c.mA) | set(c.mB)):
                n = max(n, tab[2])
            if p.wr & c.wr and not (p.wr & set(c.mC)) and c.passes < p.passes:
                n = max(n, tab[3])
        elif c.kind in ("valu", "vmem", "ds"):
            if p.wr & (c.rd | c.wr):
                n = max(n, tab[3])
            if c.kind == "valu" and set(p.mC) & c.wr:
                n = max(n, tab[4])
    elif p.kind == "vmem" and p.wide_store:
        if p.sdata & c.wr:
            n = max(n, 2 if c.kind == "valu" else 1)
    elif p.kind == "salu":
        if ("s", 124) in p.wr and c.kind == "vmem" and c.lds_dma:
            n = max(n, 1)
    return n


def pad_hazards(code, log):
    out = []
    total = 0
    for c in code:
        if c.kind not in ("label",):
            dist, short = 0, 0
            for p in reversed(out):
                if dist >= 12:
                    break
                r = required(p, c)
                if r > dist and r - dist > short:
                    short, why = r - dist, p
                dist += p.states()
            if short:
                log.append(f"nop {short}: {why.text}  ->  {c.text}")
                out.append(I(f"s_nop {short - 1}"))
                total += short
        out.append(c)
    return out, total


def finalize(seq, log):
    code = flat(seq)
    code, auto = resolve_waits(code, log)
    code, nops = pad_hazards(code, log)
    return code, auto, nops
```

```python
import math, struct, sys
sys.path.insert(0, "gen")
from fw import *

KNAME = "recurrent_scan__sliding_block__glu_gated_swiglu__prompt_kernel"
REF = "recurrent_scan__sliding_block__glu_gated_swiglu__prompt.s.ref"

def f32(x):
    return "0x%08x" % struct.unpack("<I", struct.pack("<f", x))[0]

LOG2E = math.log2(math.e)
QKV, HB, OB, PROF, OOB = 0x10000, 0x600000, 0xE00000, 0x1800000, 0x10000000
QP, HP, OP = 86016, 114688, 32768
BIG, WREG = 49152, 28672
VBASE = 24576
SPIN = 1 << 16

X, WQ, W1, W3, W2, WS = "s[4:7]", "s[8:11]", "s[12:15]", "s[16:19]", "s[20:23]", "s[24:27]"
WO, OUT = "s[12:15]", "s[16:19]"
DBG = "s[32:33]"
MASK0, TABA, TABB = 34, 66, 73
sWB, sH, sKV, sFlag, sW2, sKT, sVT = "s80", "s81", "s82", "s83", "s84", 85, 88
NEEDKV, MASKA, MASKB = "s[90:91]", "s[92:93]", "s[94:95]"
sNQ, sHL, sOst, sW4k, sRT, sCT, sNH = "s96", "s97", "s98", "s99", "s100", "s101", "s0"
tRB, tC, tROT, tW, tI, tJ, tTOK, tP0, tA, tB = ["s%d" % k for k in range(52, 62)]

vL16 = "v1"
ADG, ADK, VOG, VOK, ADW, VOW, ADX = 2, 6, 8, 12, 14, 16, 18
vRR, vNM = "v18", "v19"
vPA, vPB = "v22", "v23"
SUM, SQ = 24, 28
vFO, vOne = "v30", "v31"
XB = 32
ACC_KV, ACC_B, TMP = 144, 176, 240
ABUF, W2A, ST = 64, 112, 224
ONES = "a[248:249]"
MF = "v_mfma_f32_32x32x16_bf16"
M4 = "v_mfma_f32_4x4x4_16b_bf16"

def vr(b, n=4): return f"v[{b}:{b+n-1}]"
def ar(b, n=4): return f"a[{b}:{b+n-1}]"


class Gen:
    def __init__(self, mapping="8x4", stop=None, prof=False):
        self.mapping, self.stop, self.prof = mapping, stop, prof
        self.slow = []
        self.nstamp = 0
        self.log = []

    def stamp(self):
        if not self.prof:
            return []
        k = self.nstamp
        self.nstamp += 1
        return [Group(["s_memtime s[2:3]", WAIT(lg=0), f"v_writelane_b32 v21, s2, {k}"])]

    def check(self, name, load, cmpseq):
        self.slow += [f"L_slow_{name}:", f"s_mov_b32 s3, {SPIN}", f"L_spin_{name}:", load, "s_waitcnt vmcnt(0)"] + cmpseq + [
            f"s_cbranch_scc0 L_back_{name}", "s_sub_u32 s3, s3, 1", "s_cmp_lg_u32 s3, 0",
            f"s_cbranch_scc1 L_spin_{name}", f"s_branch L_back_{name}"]
        return Group(cmpseq + [f"s_cbranch_scc1 L_slow_{name}", f"L_back_{name}:"])

    def publish(self, event, tags):
        return [WAIT(vm=tags), I(f"buffer_store_dword {vOne}, {vFO}, {WS}, {sFlag} offen offset:{64*event} sc1")]

    def entry(self):
        o = ["s_cmp_ge_u32 s2, 256", "s_cbranch_scc1 L_exit",
             "s_load_dwordx2 s[4:5], s[0:1], 0", "s_load_dwordx16 s[36:51], s[0:1], 8",
             "s_load_dwordx2 s[24:25], s[0:1], 72"] + (["s_memtime s[64:65]"] if self.prof else []) + [
             "v_lshrrev_b32 v2, 6, v0", "v_and_b32 v0, 63, v0",
             f"s_and_b32 {tJ}, s2, 7", f"v_readfirstlane_b32 {tW}, v2", f"s_lshr_b32 {tI}, s2, 3"]
        if self.mapping == "8x4":
            o += [f"s_and_b32 {tA}, {tJ}, 1", f"s_lshl_b32 {tA}, {tA}, 3", f"s_and_b32 {tROT}, {tI}, 7",
                  f"s_add_u32 {tRB}, {tA}, {tROT}",
                  f"s_lshr_b32 {tA}, {tJ}, 1", f"s_lshl_b32 {tA}, {tA}, 2", f"s_lshr_b32 {tB}, {tI}, 3",
                  f"s_add_u32 {tC}, {tA}, {tB}", f"s_lshl_b32 {tB}, {tB}, 1", f"s_add_u32 {tROT}, {tROT}, {tB}"]
        else:
            o += [f"s_and_b32 {tA}, {tJ}, 3", f"s_lshl_b32 {tA}, {tA}, 2", f"s_and_b32 {tROT}, {tI}, 3",
                  f"s_add_u32 {tRB}, {tA}, {tROT}",
                  f"s_lshr_b32 {tA}, {tJ}, 2", f"s_lshl_b32 {tA}, {tA}, 3", f"s_lshr_b32 {tB}, {tI}, 2",
                  f"s_add_u32 {tC}, {tA}, {tB}", f"s_lshl_b32 {tROT}, {tROT}, 1", f"s_add_u32 {tROT}, {tROT}, {tB}"]
        o += [f"s_sub_u32 {tA}, {tROT}, 7", f"s_cmp_ge_u32 {tROT}, 7", f"s_cselect_b32 {tROT}, {tA}, {tROT}",
              f"s_lshl_b32 {tTOK}, {tRB}, 2", f"s_add_u32 {tTOK}, {tTOK}, {tW}",
              f"s_mul_i32 {sWB}, {tW}, {WREG}", f"s_add_u32 {sWB}, {sWB}, {BIG}",
              f"s_lshl_b32 {sW4k}, {tW}, 12",
              "s_mov_b32 s6, 1835008", "s_mov_b32 s7, 0x20000", f"s_mov_b32 s26, {OOB}", "s_mov_b32 s27, 0x20000"]
        o += ["v_lshrrev_b32 v2, 3, v0", "v_and_b32 v3, 7, v0", "v_lshrrev_b32 v4, 4, v0", "v_xor_b32 v4, v3, v4",
              "v_mul_u32_u24 v5, 896, v2", "v_lshl_add_u32 v24, v4, 4, v5", "v_xor_b32 v25, 64, v24",
              "v_add_u32 v25, 6144, v25", "v_add_u32 v26, 12288, v24", "v_add_u32 v27, 12288, v25",
              f"v_lshlrev_b32 {vL16}, 4, v0",
              f"s_mul_i32 s3, {tTOK}, 28672", f"s_lshl_b32 {tA}, {tROT}, 7", f"s_add_u32 {tA}, {tA}, s3",
              f"s_add_u32 {tB}, s3, 896",
              f"s_cmp_ge_u32 {tC}, 14", "s_cbranch_scc1 L_Q"]
        return L(o)

    def xdma(self, n):
        o = [f"s_add_u32 m0, {sWB}, {4096*n}"]
        if n:
            o += [f"s_add_u32 {tA}, {tA}, 128", f"s_cmp_eq_u32 {tA}, {tB}", f"s_cselect_b32 {tA}, s3, {tA}"]
        else:
            o += ["s_nop 0"]
        o = L(o)
        for i in range(4):
            o.append(I(f"buffer_load_dwordx4 v{24+i}, {X}, {tA} offen offset:{1024*i} lds", tag=f"x{n}" if i == 3 else None))
        return o

    def stages(self, q):
        st = []
        def dma(n, items, post):
            o = [I(f"s_add_u32 m0, {sW4k}, {16384*(n % 3)}")]
            for k, (srd, vo, so, off) in enumerate(items):
                o.append(I(f"buffer_load_dwordx4 v{vo}, {srd}, {so} offen offset:{off} lds",
                           tag=f"W{n}" if k == len(items) - 1 else None))
            return o + L(post)
        if not q:
            for n in range(7):
                t = f"s{TABA+n}"
                st.append(dma(n, [(W1, VOG, t, 0), (W1, VOG+1, t, 1024), (W3, VOG+2, t, 2048), (W3, VOG+3, t, 3072)],
                              [f"s_add_u32 {t}, {t}, 128"]))
            for s in range(4):
                it = [(WQ, VOK, f"s{TABB+2*s}", 0), (WQ, VOK+1, f"s{TABB+2*s}", 1024)]
                if s < 3:
                    it += [(WQ, VOK, f"s{TABB+2*s+1}", 2048), (WQ, VOK+1, f"s{TABB+2*s+1}", 3072)]
                st.append(dma(7+s, it, []))
            for n in range(7):
                t = f"s{TABA+n}"
                st.append(dma(11+n, [(W1, VOG, t, 0), (W1, VOG+1, t, 1024), (W3, VOG+2, t, 2048), (W3, VOG+3, t, 3072)], []))
        else:
            for blk in range(2):
                for n in range(7):
                    a, b = f"s{TABA+n}", f"s{TABB+n}"
                    post = [f"s_add_u32 {a}, {a}, s12", f"s_add_u32 {b}, {b}, s13"] if blk == 0 else []
                    st.append(dma(7*blk+n, [(WQ, VOK, a, 0), (WQ, VOK+1, a, 1024), (WQ, VOK, b, 2048), (WQ, VOK+1, b, 3072)], post))
        return st

    def steps(self, q):
        S = []
        if not q:
            for n in range(7):
                for ks in range(4):
                    S.append((n, [(ar(16*t, 16), n+ks == 0, 4*n+ks, ADG+t, ks*4096) for t in range(4)]))
            for s in range(3):
                for ks in range(4):
                    S.append((7+s, [(vr(ACC_KV+16*tt, 16), s+ks+a == 0, 4*(2*s+a)+ks, ADK+tt, ks*4096+a*2048)
                                    for a in range(2) for tt in range(2)]))
            for kp in range(2):
                S.append((10, [(vr(ACC_KV+16*tt, 16), False, 24+2*kp+a, ADK+tt, (2*kp+a)*4096)
                               for a in range(2) for tt in range(2)]))
            for n in range(7):
                for ks in range(4):
                    S.append((11+n, [(vr(ACC_B+16*t, 16), n+ks == 0, 4*n+ks, ADG+t, ks*4096) for t in range(4)]))
        else:
            for n in range(7):
                for ks in range(4):
                    S.append((n, [(ar(16*t, 16), n+ks == 0, 4*n+ks, ADK+(t & 1), ks*4096+(t >> 1)*2048) for t in range(4)]))
            for n in range(7):
                for ks in range(4):
                    S.append((7+n, [(vr(ACC_B+16*t, 16), n+ks == 0, 4*n+ks, (ADK, ADK+1, ADG)[t], ks*4096+(t >> 1)*2048)
                                    for t in range(3)]))
        return S

    def step_reads(self, S, G):
        n, fr = S[G]
        o = []
        for f, (_, _, _, ad, off) in enumerate(fr):
            for mm in range(2):
                b = ABUF + 16*(G % 3) + 4*f + 2*mm
                o.append(I(f"ds_read_b64_tr_b16 {ar(b, 2)}, v{ad} offset:{16384*(n % 3)+off+512*mm}"))
        o[-1].tag = f"R{G}"
        return o

    def center(self, j):
        s = XB + 8*j
        o = [f"v_fma_f32 v{s+e}, v{s+e}, {vRR}, {vNM}" for e in range(8)]
        o += [f"v_cvt_pk_bf16_f32 v{XB+4*j+k}, v{s+2*k}, v{s+2*k+1}" for k in range(4)]
        return o

    def unpack(self, j):
        s = XB + 8*j
        o = []
        for k in range(4):
            o += [f"v_lshlrev_b32 v{s+2*k}, 16, v{s+4+k}", f"v_and_b32 v{s+2*k+1}, 0xffff0000, v{s+4+k}"]
        o[6], o[7] = f"v_lshlrev_b32 v{s+6}, 16, v{s+7}", f"v_and_b32 v{s+7}, 0xffff0000, v{s+7}"
        return o

    def prologue(self, q, st, S):
        p = "Q" if q else "G"
        o = []
        if q:
            o += ["L_Q:"]
        o += [f"v_lshl_add_u32 v5, {tW}, 4, v2", "v_bfe_u32 v4, v0, 4, 1", "v_lshlrev_b32 v7, 4, v3"]
        o += ["v_lshlrev_b32 v6, 6, v4", "v_xor_b32 v6, v6, v7",
              f"v_mul_u32_u24 v{VOK}, 2688, v5", f"v_add_u32 v{VOK}, v{VOK}, v6", f"v_add_u32 v{VOK+1}, {8*2688-1024}, v{VOK}",
              f"v_mul_u32_u24 v{VOW}, 896, v2", f"v_add_u32 v{VOW}, v{VOW}, v6", f"v_add_u32 v{VOW+1}, 6144, v{VOW}"]
        if not q:
            o += ["v_lshlrev_b32 v6, 5, v4", "v_xor_b32 v6, v6, v7",
                  f"v_mul_u32_u24 v{VOG}, 3584, v5", f"v_add_u32 v{VOG}, v{VOG}, v6",
                  f"v_add_u32 v{VOG+1}, {8*3584-1024}, v{VOG}", f"v_xor_b32 v{VOG+2}, 64, v{VOG}", f"v_xor_b32 v{VOG+3}, 64, v{VOG+1}"]
        o += [f"s_mov_b32 s1, {tROT}"]
        if not q:
            o += [f"s_lshl_b32 {tP0}, {tC}, 8", f"s_lshl_b32 s62, {tC}, 7", "s_add_u32 s62, s62, 896"]
        else:
            o += [f"s_cmp_eq_u32 {tC}, 14", f"s_cselect_b32 {tP0}, 0, 640", f"s_add_u32 s62, {tP0}, 128", f"s_add_u32 {tP0}, {tP0}, 2048"]
        for n in range(7):
            if not q:
                o += [f"s_mul_i32 s{TABA+n}, s1, {64*3584}", f"s_add_u32 s{TABA+n}, s{TABA+n}, {tP0}",
                      f"s_mul_i32 s{TABB+n}, s1, {64*2688}", f"s_add_u32 s{TABB+n}, s{TABB+n}, s62"]
                if n % 2 == 0:
                    o += [f"s_add_u32 s{TABB+n}, s{TABB+n}, 2048"]
            else:
                o += [f"s_mul_i32 s{TABB+n}, s1, {64*2688}", f"s_add_u32 s{TABA+n}, s{TABB+n}, {tP0}",
                      f"s_add_u32 s{TABB+n}, s{TABB+n}, s62"]
            if n < 6:
                o += ["s_add_u32 s1, s1, 1", "s_cmp_eq_u32 s1, 7", "s_cselect_b32 s1, 0, s1"]
        o += ["v_mov_b32 v248, 0", "v_mov_b32 v249, 0", "v_mov_b32 v250, 0", "v_mov_b32 v251, 0"]
        o += [WAIT(lg=0)]
        if not q:
            o += ["s_cmp_lg_u32 s2, 0", "s_cbranch_scc1 L_noclear"]
            o += [I(f"buffer_store_dwordx4 v[248:251], {vL16}, {WS}, {sW4k} offen offset:{1024*k} sc1", opt=True) for k in range(4)]
            o += ["L_noclear:"]
        o += self.xdma(0)
        o += ["s_sub_u32 s8, s36, 2048", "s_subb_u32 s9, s37, 0", f"s_mov_b32 s10, {448*2688+2048}", "s_mov_b32 s11, 0x20000"]
        o += self.xdma(1)
        if not q:
            o += ["s_mov_b32 s12, s42", "s_mov_b32 s13, s43", f"s_mov_b32 s14, {448*3584}", "s_mov_b32 s15, 0x20000",
                  "s_sub_u32 s16, s44, 2048", "s_subb_u32 s17, s45, 0", f"s_mov_b32 s18, {448*3584+2048}", "s_mov_b32 s19, 0x20000"]
        else:
            o += [f"s_cmp_eq_u32 {tC}, 14", "s_cselect_b32 s12, 384, 0", "s_cselect_b32 s13, 640, 0", "s_sub_u32 s12, s12, 128", "s_sub_u32 s13, s13, 384"]
        m0fix = lambda s: [s[0], I("s_nop 0")] + s[1:]
        o += m0fix(st[0])
        for n in range(2, 7):
            o += self.xdma(n)
        o += m0fix(st[1]) + m0fix(st[2])
        o += self.setup(q)
        for n in range(7):
            o += [WAIT(vm=f"x{n}")]
            for ks in range(4):
                j = 4*n + ks
                o += [I(f"ds_read_b128 {vr(XB+8*j+4)}, v{ADX+ks} offset:{4096*n}", tag=f"xr{j}")]
            if n == 0 and not q:
                o += ["s_cmp_lg_u32 s2, 0", "s_cbranch_scc1 L_nodbg", f"s_lshr_b32 s3, {sW4k}, 10", "v_mov_b32 v254, s3", "v_mov_b32 v255, 1",
                      I(f"global_store_dword v254, v255, {DBG} sc1", opt=True), "L_nodbg:"]
            if n == 0:
                o += ["s_mov_b32 vcc_lo, 0xaaaaaaaa", "s_mov_b32 vcc_hi, 0xaaaaaaaa"]
            if n == 1:
                o += ["s_mov_b32 s2, 0xcccccccc", "s_mov_b32 s3, 0xcccccccc"]
            if n == 2:
                o += ["s_barrier"] + self.step_reads(S, 0) + self.step_reads(S, 1)
            for ks in range(4):
                j = 4*n + ks
                r = XB + 8*j + 4
                u = self.unpack(j - 1) if (ks and n < 6) else []
                cs = "0" if j == 0 else vr(SUM)
                cq = "0" if j == 0 else vr(SQ)
                o += [WAIT(lg=f"xr{j}"),
                      f"{M4} {vr(SUM)}, {ONES}, {vr(r, 2)}, {cs}", f"{M4} {vr(SQ)}, {vr(r, 2)}, {vr(r, 2)}, {cq}"] + u[:4]
                o += [f"{M4} {vr(SUM)}, {ONES}, {vr(r+2, 2)}, {vr(SUM)}", f"{M4} {vr(SQ)}, {vr(r+2, 2)}, {vr(r+2, 2)}, {vr(SQ)}"] + u[4:]
            if n < 6:
                o += self.unpack(4*n + 3)
        fill = sum((self.unpack(j) for j in range(24, 28)), [])
        take = lambda k: [fill.pop(0) for _ in range(min(k, len(fill)))]
        o += take(5)
        o += [f"v_cndmask_b32 v{SQ}, v{SQ}, v{SQ+1}, vcc", f"v_cndmask_b32 v{SQ+2}, v{SQ+2}, v{SQ+3}, vcc",
              f"v_mov_b32 v{SUM+1}, v{SUM}", f"v_cndmask_b32 v{SQ}, v{SQ}, v{SQ+2}, s[2:3]"] + take(1)
        o += [f"v_mov_b32 v{SQ+1}, v{SQ}", f"v_permlane32_swap_b32 v{SUM}, v{SUM+1}"] + take(1)
        o += [f"v_permlane32_swap_b32 v{SQ}, v{SQ+1}", f"v_add_f32 v{SUM}, v{SUM}, v{SUM+1}", f"v_add_f32 v{SQ}, v{SQ}, v{SQ+1}",
              f"v_mul_f32 v{SUM}, {f32(-1/448)}, v{SUM}", f"v_mul_f32 v{SQ}, {f32(1/448)}, v{SQ}",
              f"v_fma_f32 v{SQ}, -v{SUM}, v{SUM}, v{SQ}", f"v_max_f32 v{SQ}, 0, v{SQ}",
              f"v_add_f32 v{SQ}, {f32(1e-5)}, v{SQ}", f"v_rsq_f32 v{SQ}, v{SQ}"] + take(1)
        o += [f"v_mul_f32 {vRR}, {f32(LOG2E)}, v{SQ}", f"v_mul_f32 {vNM}, v{SUM}, {vRR}"]
        o += self.center(0) + self.center(1) + fill
        o += [f"v_accvgpr_read_b32 {vFO}, a{ST+15}", f"v_mov_b32 {vOne}, 1"]
        return L(o)

    def setup(self, q):
        o = []
        o += ["s_mov_b32 s20, s46", "s_mov_b32 s21, s47", f"s_cmp_lt_u32 {tI}, 28", f"s_cselect_b32 s22, {1792*896}, 0",
              f"s_cselect_b32 {sNH}, 0x3fff3fff, 0", "s_mov_b32 s23, 0x20000",
              "s_mov_b32 s28, s38", "s_mov_b32 s29, s39", "s_mov_b32 s30, s48", "s_mov_b32 s31, s49",
              "s_mov_b32 s32, s50", "s_mov_b32 s33, s51"]
        o += [f"s_and_b32 {tA}, {tI}, 3", f"s_lshl_b32 {sRT}, {tJ}, 2", f"s_add_u32 {sRT}, {sRT}, {tA}", f"s_lshr_b32 {sCT}, {tI}, 2",
              f"s_mul_i32 {tP0}, {tC}, 7", f"s_lshr_b32 {tP0}, {tP0}, 1",
              f"s_mul_i32 {sH}, {tTOK}, {HP}", f"s_lshl_b32 {tA}, {tC}, 13", f"s_add_u32 {sH}, {sH}, {tA}", f"s_add_u32 {sH}, {sH}, {HB}",
              f"s_mul_i32 {tB}, {tTOK}, {QP}", f"s_add_u32 {tB}, {tB}, {QKV}"]
        if not q:
            o += [f"s_lshl_b32 {tA}, {tC}, 12", f"s_add_u32 {sKV}, {tB}, {tA}", f"s_add_u32 {sKV}, {sKV}, {56*512}"]
        else:
            o += [f"s_cmp_eq_u32 {tC}, 14", f"s_cselect_b32 {tA}, 0, {40*512}", f"s_add_u32 {sKV}, {tB}, {tA}",
                  f"s_cmp_eq_u32 {tC}, 14", f"s_cselect_b32 {tA}, 16, 32", f"s_lshl_b32 {tA}, {tA}, 9", f"s_add_u32 s14, {tB}, {tA}",
                  f"s_cmp_eq_u32 {tC}, 14", f"s_cselect_b32 {tA}, 24, 28", f"s_lshl_b32 {tA}, {tA}, 9", f"s_add_u32 s15, {tB}, {tA}"]
        o += [f"s_lshl_b32 {sFlag}, {tTOK}, 8", f"s_lshl_b32 {tA}, {tC}, 2", f"s_add_u32 {sFlag}, {sFlag}, {tA}",
              f"s_mul_i32 {sW2}, {tW}, {16*896}", f"s_lshl_b32 {tA}, {sCT}, 7", f"s_add_u32 {sW2}, {sW2}, {tA}",
              f"s_lshl_b32 {tA}, {tP0}, 9", f"s_add_u32 {tA}, {tA}, {56*512}",
              f"s_add_u32 s{sKT+2}, {tB}, {tA}", f"s_add_u32 {tA}, {tA}, {QKV}"]
        for pp in (0, 1):
            o += [f"s_sub_u32 s{sKT+pp}, s{sKT+2}, {(2-pp)*4*QP}", f"s_add_u32 s{sVT+pp}, s{sKT+pp}, {56*512}",
                  f"s_cmp_ge_u32 {tRB}, {2-pp}", f"s_cselect_b32 s{sKT+pp}, s{sKT+pp}, {tA}", f"s_cselect_b32 s{sVT+pp}, s{sVT+pp}, {OOB}"]
        o += [f"s_lshr_b32 {tA}, {tP0}, 3", f"s_lshl_b32 s91, 0x81, {tA}", f"s_add_u32 {tA}, {tP0}, 3", f"s_lshr_b32 {tA}, {tA}, 3",
              f"s_lshl_b32 {tA}, 0x81, {tA}", f"s_or_b32 s91, s91, {tA}", "s_mul_i32 s90, s91, 0x10001",
              f"s_cmp_ge_u32 {tC}, 8", f"s_cselect_b32 {sNQ}, 2, 1",
              f"s_lshl_b32 {sNQ}, {sNQ}, 14",
              f"s_bitcmp1_b32 {tC}, 0", "s_cselect_b32 s92, -1, 0", "s_mov_b32 s93, 0", "s_mov_b32 s94, 0", "s_cselect_b32 s95, 0, -1",
              f"s_mul_i32 {sHL}, {sRT}, {2*HP}", f"s_lshl_b32 {tA}, {tW}, 10", f"s_add_u32 {sHL}, {sHL}, {tA}", f"s_add_u32 {sHL}, {sHL}, {HB}",
              f"s_lshl_b32 {sOst}, {tTOK}, 15", f"s_lshl_b32 {tA}, {tC}, 11", f"s_add_u32 {sOst}, {sOst}, {tA}", f"s_add_u32 {sOst}, {sOst}, {OB}"]
        o += ["v_lshrrev_b32 v240, 5, v0", "v_bfe_u32 v241, v0, 4, 1", "v_bfe_u32 v242, v0, 2, 2", "v_and_b32 v243, 3, v0",
              "v_and_b32 v244, 31, v0", "v_bfe_u32 v245, v0, 3, 1",
              "v_lshlrev_b32 v246, 7, v242", "v_lshl_add_u32 v246, v243, 3, v246",
              "v_lshl_add_u32 v247, v245, 1, v241", "v_lshl_add_u32 v247, v247, 5, v246",
              f"v_lshl_add_u32 v{ADK}, v240, 10, v247", f"v_xor_b32 v{ADK+1}, 64, v{ADK}",
              f"v_lshl_add_u32 v{ADW}, v240, 9, v247", f"v_add_u32 v{ADW}, {sWB}, v{ADW}",
              f"s_lshr_b32 {tA}, {tW}, 1", f"s_lshl_b32 {tA}, {tA}, 6", f"v_xor_b32 v{ADW}, {tA}, v{ADW}", f"v_xor_b32 v{ADW+1}, 64, v{ADW}"]
        if not q:
            o += ["v_lshl_add_u32 v247, v241, 1, v245", "v_lshl_add_u32 v247, v247, 5, v246", "v_lshl_add_u32 v247, v240, 10, v247",
                  f"v_lshl_add_u32 v{ADG}, v241, 11, v247"] + [f"v_xor_b32 v{ADG+t}, {32*t}, v{ADG}" for t in (1, 2, 3)]
        else:
            o += [f"s_and_b32 {tA}, {tC}, 1", f"s_lshl_b32 {tA}, {tA}, 6", f"v_xor_b32 v{ADG}, {tA}, v{ADK}"]
        o += ["v_bfe_u32 v247, v0, 1, 3", "v_xor_b32 v247, v247, v240", "v_lshlrev_b32 v247, 4, v247",
              f"v_lshl_add_u32 v{ADX}, v244, 7, v247", f"v_add_u32 v{ADX}, {sWB}, v{ADX}"]
        o += [f"v_xor_b32 v{ADX+k}, {32*k}, v{ADX}" for k in (1, 2, 3)]
        o += ["v_mov_b32 v247, 0x3f803f80", "v_accvgpr_write_b32 a248, v247", "v_accvgpr_write_b32 a249, v247"]
        o += ["v_lshrrev_b32 v246, 4, v0", "v_min_u32 v246, 2, v246", f"s_sub_u32 {tA}, {tTOK}, 8",
              f"v_lshl_add_u32 v246, v246, 2, {tA}", "v_max_i32 v246, 0, v246", "v_and_b32 v247, 15, v0", "v_lshlrev_b32 v247, 2, v247",
              f"v_lshl_add_u32 {vPA}, v246, 8, v247",
              f"s_lshl_b32 {tA}, {sRT}, 9", f"s_add_u32 {tA}, {tA}, 64", "v_lshl_add_u32 v247, v241, 8, v247", "v_lshl_add_u32 v247, v240, 6, v247",
              f"v_add_u32 {vPB}, {tA}, v247"]
        W = lambda k, v: f"v_accvgpr_write_b32 a{ST+k}, v{v}"
        o += ["v_lshlrev_b32 v238, 9, v240", "v_lshlrev_b32 v246, 2, v240", "v_xor_b32 v246, v246, v244",
              "v_lshl_add_u32 v236, v246, 4, v238", "v_xor_b32 v237, 128, v236", W(0, 236), W(1, 237)]
        for pp in (0, 1):
            o += [f"s_cmp_ge_u32 {tRB}, {2-pp}", "s_cselect_b64 vcc, -1, 0",
                  "v_cndmask_b32 v246, v238, v236, vcc", "v_cndmask_b32 v247, v238, v237, vcc", W(2+2*pp, 246), W(3+2*pp, 247)]
        o += [f"s_lshl_b32 {tA}, {tW}, 11", f"v_add_u32 v246, {tA}, v236", f"v_add_u32 v247, {tA}, v237", W(6, 246), W(7, 247),
              f"s_add_u32 {tA}, {tA}, {VBASE}",
              "v_lshrrev_b32 v246, 1, v243", "v_lshl_add_u32 v246, v241, 1, v246",
              "v_lshl_add_u32 v247, v240, 2, v242", "v_lshlrev_b32 v239, 2, v246", "v_xor_b32 v247, v247, v239",
              "v_lshlrev_b32 v247, 4, v247", "v_lshl_add_u32 v247, v246, 9, v247", "v_and_b32 v246, 1, v0", "v_lshl_add_u32 v247, v246, 3, v247",
              f"v_add_u32 v247, {tA}, v247", W(8, 247), "v_xor_b32 v247, 128, v247", W(9, 247),
              f"s_bitcmp1_b32 {tC}, 0", f"s_cselect_b32 {tB}, 0, {3*512+8}", f"s_add_u32 {tA}, {tA}, {tB}",
              f"v_lshl_add_u32 v246, v244, 4, {tA}", "v_lshl_add_u32 v247, v240, 13, v246", W(10, 247),
              "v_add_u32 v246, 16384, v246", W(11, 246),
              f"v_add_u32 v246, {tRB}, v240", "v_cmp_le_u32 vcc, 2, v246", "v_mov_b32 v247, 0x3f803f80", "s_nop 0",
              "v_cndmask_b32 v247, 0, v247, vcc", W(12, 247),
              f"s_and_b32 {tA}, {tW}, 1", f"s_mul_i32 {tB}, {tA}, {HP}", f"v_add_u32 v246, {tB}, {vL16}", W(13, 246),
              f"s_sub_u32 {tB}, {HP}, {tB}", f"v_add_u32 v246, {tB}, {vL16}", W(14, 246),
              "v_cmp_eq_u32 vcc, 0, v0", f"v_mov_b32 v247, {OOB}", "s_nop 0", "v_cndmask_b32 v247, v247, v0, vcc", W(15, 247),
              "v_lshlrev_b32 v246, 2, v240", "v_sub_u32 v246, v244, v246", "v_mov_b32 v238, 0xffff", "v_mov_b32 v239, 0xffff0000"]
        for d in range(8):
            k0 = 8*(d >> 1) + 2*(d & 1)
            o += [f"v_cmp_le_i32 vcc, {k0}, v246", f"v_cmp_le_i32 s[62:63], {k0+1}, v246", "s_nop 0",
                  "v_cndmask_b32 v236, 0, v238, vcc", "v_cndmask_b32 v237, 0, v239, s[62:63]", "v_or_b32 v236, v236, v237", W(16+d, 236)]
        if self.prof:
            o += ["v_mov_b32 v236, s64", "v_accvgpr_write_b32 a250, v236"]
        for r in range(16):
            k0 = 8*(r >> 2) + (r & 3)
            o += [f"s_mov_b32 s{MASK0+2*r}, 0x{(0xffffffff << k0) & 0xffffffff:x}",
                  f"s_mov_b32 s{MASK0+2*r+1}, 0x{(0xffffffff << (k0+4)) & 0xffffffff:x}"]
        return o

    def epi_gu(self, t, from_acc, tag):
        o = []
        if from_acc:
            g, u, out = TMP, TMP+4, TMP+8
        for half in range(2):
            if from_acc:
                o += [f"v_accvgpr_read_b32 v{g+e}, a{16*t+4*half+e}" for e in range(4)]
                o += [f"v_accvgpr_read_b32 v{u+e}, a{16*t+8+4*half+e}" for e in range(4)]
            else:
                g, u, out = ACC_B+16*t+4*half, ACC_B+16*t+8+4*half, ACC_B+16*t
            o += [f"v_mul_f32 v{u+e}, v{g+e}, v{u+e}" for e in range(4)]
            o += [f"v_exp_f32 v{g+e}, -v{g+e}" for e in range(4)]
            o += [f"v_add_f32 v{g+e}, 1.0, v{g+e}" for e in range(4)]
            o += [f"v_rcp_f32 v{g+e}, v{g+e}" for e in range(4)]
            o += [f"v_mul_f32 v{u+e}, v{g+e}, v{u+e}" for e in range(4)]
            o += [f"v_cvt_pk_bf16_f32 v{out+2*half+k}, v{u+2*k}, v{u+2*k+1}" for k in range(2)]
        o += [I(f"buffer_store_dwordx4 {vr(out)}, {vL16}, {WS}, {sH} offen offset:{1024*t} sc1", tag=tag)]
        return o

    def epi_qkv(self, src, acc, scale, soff, off, tag):
        o = []
        for qq in range(2):
            n = TMP + 8*qq if acc else src + 8*qq
            if acc:
                o += [f"v_accvgpr_read_b32 v{n+e}, a{src+8*qq+e}" for e in range(8)]
            if scale:
                o += [f"v_mul_f32 v{n+e}, {f32(28**-0.5/LOG2E)}, v{n+e}" for e in range(8)]
            o += [f"v_cvt_pk_bf16_f32 v{n+k}, v{n+2*k}, v{n+2*k+1}" for k in range(4)]
        for qq in range(2):
            n = TMP + 8*qq if acc else src + 8*qq
            o += [f"v_permlane32_swap_b32 v{n}, v{n+2}", f"v_permlane32_swap_b32 v{n+1}, v{n+3}"]
        for qq in range(2):
            n = TMP + 8*qq if acc else src + 8*qq
            o += [I(f"buffer_store_dwordx4 {vr(n)}, {vL16}, {WS}, {soff} offen offset:{off+1024*qq} sc1", tag=tag if qq else None)]
        return o

    def w2dma(self, srd, i, tag, adv):
        o = [Group([f"s_add_u32 m0, {sWB}, {2048*i}", f"s_add_u32 {sW2}, {sW2}, {adv}" if adv else "s_nop 0"]),
             I(f"buffer_load_dwordx4 v{VOW}, {srd}, {sW2} offen lds"),
             I(f"buffer_load_dwordx4 v{VOW+1}, {srd}, {sW2} offen offset:1024 lds", tag=tag)]
        return o

    def slab_reads(self, i, dst, tag):
        o = [I(f"ds_read_b64_tr_b16 {ar(dst+4*tt+2*mm, 2)}, v{ADW+tt} offset:{2048*i+1024*mm}") for tt in range(2) for mm in range(2)]
        o[-1].tag = tag
        return o

    def kvdma(self, which, pp):
        base = (0 if which == "K" else VBASE) + 8192*pp
        vo = (152 + 2 + 2*pp if (which == "K" and pp < 2) else 152)
        pre = [f"s_lshr_b32 s2, {sW4k}, 1", f"s_add_u32 m0, s2, {base}"]
        if which == "K":
            so = f"s{sKT+pp}"
            pre += ["s_nop 0"]
        elif pp < 2:
            so = f"s{sVT+pp}"
            pre += ["s_nop 0"]
        else:
            so = f"s{sVT}"
            pre += [f"s_add_u32 {so}, s{sKT+2}, {56*512}"]
        return [Group(pre), I(f"buffer_load_dwordx4 v{vo}, {WS}, {so} offen sc1 lds"),
                I(f"buffer_load_dwordx4 v{vo+1}, {WS}, {so} offen offset:1024 sc1 lds", tag=f"{which}{pp}")]

    def gemm1(self, q, st, S):
        p = "Q" if q else "G"
        tl = Timeline()
        first = []
        for G, (n, fr) in enumerate(S):
            for f, (acc, z, j, _, _) in enumerate(fr):
                g = tl.add(f"{MF} {acc}, {ar(ABUF+16*(G % 3)+4*f)}, {vr(XB+4*j)}, {'0' if z else acc}")
                if f == 0:
                    first.append(g)
        NS = len(S)
        first.append(len(tl.m))
        start = [min(G for G in range(NS) if S[G][0] == n) for n in range(len(st))] + [NS]
        bar = {start[n+1]-2: n for n in range(len(st))}
        bargap = {}
        for G in range(NS):
            g0, w = first[G], first[G+1] - first[G]
            tl.pin(g0, [WAIT(lg=f"R{G}")], "pre")
            if G in bar:
                n = bar[G]
                gb = g0 + (1 if w == 4 else 0)
                tl.pin(gb, [WAIT(vm=f"W{n+1}" if n+1 < len(st) else None, lg=0), "s_barrier"])
                bargap[n] = gb
            if G + 2 < NS:
                rd = self.step_reads(S, G+2)
                if w == 4:
                    cnt = (0, 2, 3, 3) if G in bar else (3, 3, 2, 0)
                else:
                    cnt = (1, 3, 3) if G in bar else (3, 3, 2)
                k = 0
                for gg, c in enumerate(cnt):
                    tl.pin(g0+gg, rd[k:k+c], "mem")
                    k += c
                assert k >= len(rd)
        nA = 28
        gA_end = first[nA] - 1
        last = len(tl.m) - 1
        info = []
        nb = len(st)
        if not q:
            planA = {0: [0], 1: [1, 2], 2: [3], 3: [4, 5], 4: [6], 5: [7, 8], 6: [9, 10], 7: [11, 12], 8: [13]}
            planB = {10: [0, 1], 11: [2, 3], 12: [4, 5], 13: [6, 7], 14: [8, 9], 15: [10, 11], 16: [12, 13]}
            kvplan = {17: [("K", 0), ("K", 1), ("K", 2), ("V", 0), ("V", 1), ("V", 2)]}
            rd_from = {i: bargap[max(k for k in planA if i in planA[k]) + 3] + 1 for i in range(14)}
        else:
            planA = {0: [0], 1: [1, 2], 2: [3, 4], 3: [5, 6], 4: [7, 8], 5: [9, 10], 6: [11, 12, 13]}
            planB = {8: [0, 1], 9: [2, 3, 4], 10: [5, 6, 7], 11: [8, 9, 10], 12: [11, 12, 13]}
            kvplan = {}
            rd_from = {i: bargap[max(k for k in planA if i in planA[k]) + 3 if i >= 3 else 6] + 1 for i in range(14)}
        self.kvleft = [] if not q else [("K", 0), ("K", 1), ("K", 2), ("V", 0), ("V", 1), ("V", 2)]
        ring_end = {}
        for n in range(nb):
            s = list(st[n+3]) if n+3 < nb else []
            if s:
                s = [Group([s[0]])] + s[1:]
            end = bargap[n+1] - 1 if n+1 < nb else last
            if s:
                tl.pin(bargap[n], [s[0]], "head")
                e, b = tl.flow(s[1:], bargap[n]+1, end, name=f"ring{n}")
                ring_end[n] = e
            else:
                ring_end[n] = bargap[n]
        g = 0
        for j in range(2, 28):
            g, b = tl.flow(self.center(j), g, first[j]-2, name=f"center{j}")
            info.append(b)
        dbgload = f"global_load_dwordx4 v[24:27], {vFO}, {DBG} sc1".replace(vFO, "v20")
        dbgcmp = ["v_and_b32 v24, v24, v25", "v_and_b32 v26, v26, v27", "v_and_b32 v24, v24, v26", "v_cmp_ne_u32 vcc, 1, v24", "s_cmp_lg_u64 vcc, 0"]
        tl.flow(["v_mov_b32 v20, 0", At(first[20]), I(dbgload, tag="dbg"), At(first[27]), WAIT(vm="dbg"),
                 self.check("dbg"+p, dbgload, dbgcmp)], first[18], first[29], name="dbg")
        rd_done = {}
        for i in range(14):
            e, b = tl.flow([WAIT(vm=f"w2a{i}")] + self.slab_reads(i, W2A+8*i, f"w2r{i}"), rd_from[i], last, budget=28, maxds=3, name="w2r")
            rd_done[i] = e
        if not q:
            sA = sum((self.epi_gu(t, True, f"hA{t}") for t in range(4)), []) + [f"s_add_u32 {sH}, {sH}, 4096"]
            sK = sum((self.epi_qkv(ACC_KV+16*tt, False, False, sKV, 2048*tt, f"kv{tt}") for tt in range(2)), [])
            e, b = tl.flow(sK, first[42]+3, first[47], name="epiK"); info.append(("epiK", e, b))
            e, b = tl.flow(sA, first[28]+3, first[52], name="epiA"); info.append(("epiA", e, b))
            tl.flow(self.publish(0, "kv1"), bargap[13]+1, last)
            tl.flow(self.publish(1, "hA3"), bargap[15]+1, last)
        else:
            sA = []
            for t in range(4):
                sA += self.epi_qkv(16*t, True, True, sKV, 2048*(t & 1), f"q{t}")
                if t == 1:
                    sA += [f"s_add_u32 {sKV}, {sKV}, 4096"]
            e, b = tl.flow(sA, first[28]+3, first[48], name="epiA"); info.append(("epiA", e, b))
        pollKV = f"buffer_load_dword v28, {vPA}, {WS}, 0 offen sc1"
        cmpKV = ["v_cmp_eq_u32 vcc, 1, v28", f"s_andn2_b64 vcc, {NEEDKV}, vcc"]
        self.pollKV, self.cmpKV = pollKV, cmpKV
        restore = [f"v_accvgpr_read_b32 v{152+k}, a{ST+k}" for k in range(6)]
        if not q:
            tl.flow(restore + [At(first[62]), I(pollKV, tag="pkv"), At(bargap[17]-3), WAIT(vm="pkv"), self.check("kv"+p, pollKV, cmpKV)],
                    first[48], bargap[17]-1, name="pollkv")
        else:
            self.pre_att = restore
        for n in range(nb):
            s = []
            for i in planA.get(n, []):
                s += self.w2dma(W2, i, f"w2a{i}", 128*896 if i else 0)
            for w_, pp in kvplan.get(n, []):
                s += self.kvdma(w_, pp)
            for i in planB.get(n, []):
                adv = 128*896 if i else (64*896 - 13*128*896) & 0xffffffff
                s += [At(rd_done[i]+1), WAIT(lg=f"w2r{i}")] + self.w2dma(W2, i, f"w2b{i}", adv)
            if s:
                end = bargap[n+1] - 1 if n+1 < nb else last
                e, b = tl.flow(s, ring_end[n]+1, end, name=f"pf{n}")
                info.append((f"pf{n}", e, b))
        self.log.append(f"{p} gemm1 estimate {tl.estimate()} cycles; {info}")
        return tl.emit()

    def attention(self, q):
        p = "Q" if q else "G"
        o = []
        if not q:
            for t in range(4):
                o += self.epi_gu(t, False, f"hB{t}")
        else:
            for t, (so, off) in enumerate((("s14", 0), ("s14", 2048), ("s15", 0))):
                o += self.epi_qkv(ACC_B+16*t, False, True, so, off, f"q{4+t}")
            o += self.pre_att + [I(self.pollKV, tag="pkv")] + self.publish(0, "q6") + [WAIT(vm="pkv"), self.check("kv"+p, self.pollKV, self.cmpKV)]
            for w_, pp in self.kvleft:
                o += self.kvdma(w_, pp)
        o += self.stamp()
        pollH = f"buffer_load_dword v29, {vPB}, {WS}, 0 offen sc1"
        cmpQ = ["v_cmp_eq_u32 vcc, 1, v28", f"s_andn2_b32 vcc_lo, {sNQ}, vcc_hi"]
        cmpHA = ["v_cmp_eq_u32 vcc, 1, v29", f"s_andn2_b32 vcc_lo, {sNH}, vcc_lo"]
        o += [I(self.pollKV, tag="pq"), I(pollH, tag="ph")]
        o += [f"v_accvgpr_read_b32 v{2+k}, a{ST+6+k}" for k in range(9)]
        o += [f"v_accvgpr_read_b32 v{168+k}, a{ST+16+k}" for k in range(8)]
        o += ["v_mov_b32 v11, 0x3f803f80", f"s_sub_u32 s1, s{sKT+2}, {56*512}"]
        o += [WAIT(vm="pq"), self.check("q"+p, self.pollKV, cmpQ)]
        o += [I(f"buffer_load_dwordx4 {vr(144+4*ks)}, {vL16}, {WS}, s1 offen offset:{1024*ks} sc1") for ks in range(2)]
        o += [WAIT(vm="ph"), self.check("ha"+p, pollH, cmpHA)]
        hA = []
        for c in range(14):
            hA += [I(f"buffer_load_dwordx4 {vr(XB+8*c+4*b)}, v{9+b}, {WS}, {sHL} offen sc1", tag=f"hl{c}") for b in range(2)]
            hA += [f"s_add_u32 {sHL}, {sHL}, {8192 if c < 13 else (4096-13*8192) & 0xffffffff}"]
        o += [WAIT(vm="V2"), "ds_write_b32 v6, v8", "ds_write_b32 v7, v11", WAIT(lg=0), "s_barrier"]
        order = [0, 8, 1, 2, 3, 4, 5, 6, 7]
        for i in order:
            o += [I(f"ds_read_b128 {ar(8*i+4*ks)}, v{2+ks} offset:{2048*i+1024*ks}") for ks in range(2)]
        o += hA
        o += [f"v_cndmask_b32 v144, v144, 0, {MASKA}", f"v_cndmask_b32 v145, v145, 0, {MASKA}",
              f"v_cndmask_b32 v150, v150, 0, {MASKB}", f"v_cndmask_b32 v151, v151, 0, {MASKB}"]
        o += self.stamp()
        tl = Timeline()
        sb = [176, 192, 208, 224, 240]
        buf = {i: sb[k % 5] for k, i in enumerate(order)}
        done = {}
        for i in order:
            tl.add(f"{MF} {vr(buf[i], 16)}, {ar(8*i)}, {vr(144)}, 0")
            done[i] = tl.add(f"{MF} {vr(buf[i], 16)}, {ar(8*i+4)}, {vr(148)}, {vr(buf[i], 16)}")
        merge = lambda a, b: [f"v_cndmask_b32 v{a+r}, v{a+r}, v{b+r}, s[{MASK0+2*r}:{MASK0+2*r+1}]" for r in range(16)]
        def mx(b, init):
            s = []
            for k in range(8):
                m = 12 + (k & 1)
                s.append(f"v_max3_f32 v{m}, v{b+2*k}, v{b+2*k+1}, v{b+2*k if init and k < 2 else m}")
            return s
        s = [At(done[8]+2)] + merge(buf[0], buf[8]) + mx(buf[0], True)
        for i in range(1, 6):
            s += [At(done[i]+2)] + mx(buf[i], False)
        tl.flow(s, 0, budget=24)
        o += tl.emit() + mx(buf[6], False) + mx(buf[7], False)
        o += ["v_max_f32 v12, v12, v13", "v_mov_b32 v13, v12", "v_permlane32_swap_b32 v12, v13", "v_max_f32 v12, v12, v13"]
        o += [f"v_sub_f32 v{152+r}, 0, v12" for r in range(16)]
        o += self.stamp()
        NEG, O = vr(152, 16), vr(240, 16)
        sbuf = {0: 176, 8: 192, 1: 208, 2: 192, 3: 176, 4: 208, 5: 192, 6: 176, 7: 208}
        vbuf = {i: 72 + 8*(k % 5) for k, i in enumerate(order)}
        Sm = lambda i: [f"{MF} {vr(sbuf[i], 16)}, {ar(8*i)}, {vr(144)}, {NEG}",
                        f"{MF} {vr(sbuf[i], 16)}, {ar(8*i+4)}, {vr(148)}, {vr(sbuf[i], 16)}"]
        Vr = lambda i: [f"ds_read_b64_tr_b16 {ar(vbuf[i]+4*s_+2*mm, 2)}, v{4+mm} offset:{2048*i+256*s_}" for s_ in range(2) for mm in range(2)]
        PV = lambda i, P, z=False: [f"{MF} {O}, {ar(vbuf[i])}, {vr(P)}, {'0' if z else O}", f"{MF} {O}, {ar(vbuf[i]+4)}, {vr(P+4)}, {O}"]
        def body(b, P, ms, rds):
            s = []
            ms, rds = list(ms), list(rds)
            for k in range(4):
                s += [f"v_exp_f32 v{b+4*k+e}, v{b+4*k+e}" for e in range(4)]
                if k:
                    s += [f"v_cvt_pk_bf16_f32 v{P+2*k-2+e}, v{b+4*k-4+2*e}, v{b+4*k-3+2*e}" for e in range(2)]
                if ms:
                    s += [ms.pop(0)]
                    if rds:
                        s += [rds.pop(0)]
            s += rds
            s += [f"v_cvt_pk_bf16_f32 v{P+6+e}, v{b+12+2*e}, v{b+13+2*e}" for e in range(2)]
            return s
        o += Sm(0) + Vr(0) + Sm(8) + Vr(8) + Sm(1) + Vr(1)
        o += merge(176, 192)
        o += body(176, 224, Sm(2), Vr(2))
        o += [f"v_and_b32 v{232+k}, v{168+k}, v{224+k}" for k in range(8)] + [f"v_xor_b32 v{224+k}, v{232+k}, v{224+k}" for k in range(8)]
        PB = {1: 168, 2: 224, 3: 168, 4: 224, 5: 168, 6: 224, 7: 168}
        o += body(208, PB[1], PV(0, 224, True) + PV(8, 232), [])
        for i in range(2, 8):
            ms = (Sm(i+1) if i < 7 else []) + PV(i-1, PB[i-1])
            o += body(sbuf[i], PB[i], ms, Vr(i+1) if i < 7 else [])
            if i == 3 and not q:
                o += self.publish(2, "hB3")
        o += PV(7, PB[7])
        o += self.stamp()
        o += [f"v_cndmask_b32 v12, 0, v240, {MASKA}", f"v_cndmask_b32 v12, v12, v252, {MASKB}", "v_mov_b32 v13, v12",
              "v_permlane32_swap_b32 v12, v13", "v_add_f32 v12, v12, v13", "v_rcp_f32 v12, v12",
              f"v_mul_f32 v12, {f32(LOG2E**-3)}, v12", f"v_cndmask_b32 v13, v12, 0, {MASKA}", f"v_cndmask_b32 v11, v12, 0, {MASKB}"]
        for r in (4, 5, 6, 7, 8, 9, 10, 11, 0, 1, 2, 3, 12, 13, 14, 15):
            o += [f"v_mul_f32 v{240+r}, v{13 if r < 4 else 11 if r >= 12 else 12}, v{240+r}"]
        o += [f"v_cvt_pk_bf16_f32 v{232+k}, v{240+2*k}, v{241+2*k}" for k in range(8)]
        o += [I(f"buffer_store_dwordx4 {vr(232+4*m)}, {vL16}, {WS}, {sOst} offen offset:{1024*m} sc1", tag=f"o{m}") for m in range(2)]
        self.pollH = pollH
        return L(o)

    def phase4(self, q):
        p = "Q" if q else "G"
        o = [f"s_cmp_eq_u32 {sNH}, 0", f"s_cbranch_scc1 L_fin{p}"]
        self.slow += [f"L_fin{p}:", "s_waitcnt vmcnt(0)",
                      f"buffer_store_dword {vOne}, {vFO}, {WS}, {sFlag} offen offset:192 sc1", "s_endpgm"]
        cmpHB = ["v_cmp_eq_u32 vcc, 1, v29", f"s_andn2_b32 vcc_lo, {sNH}, vcc_hi"]
        o += [I(self.pollH, tag="phb")]
        tl = Timeline()
        HBR, OR_, ACS = 144, 32, 112
        def kstep(a, b, acc, z):
            g = []
            for sg in range(4):
                d = ar(acc+16*sg, 16)
                g.append(tl.add(f"{MF} {d}, {ar(a+4*(sg >> 1))}, {vr(b+4*(sg & 1))}, {'0' if z else d}"))
            return g[0]
        gA = [kstep(W2A+8*c, XB+8*c, 0, c == 0) for c in range(14)]
        bb = lambda k: ABUF + 8*(k % 6)
        gB = [kstep(bb(c), HBR+8*c, 0, False) for c in range(14)]
        last = len(tl.m) - 1
        for c in range(14):
            tl.pin(gA[c], [WAIT(vm=f"hl{c}")], "pre")
            tl.pin(gB[c], [WAIT(vm=f"hb{c}", lg=f"rb{c}")], "pre")
        tl.pin(gA[6], ["s_barrier"])
        hB = [At(gA[3]), WAIT(vm="phb"), self.check("hb"+p, self.pollH, cmpHB)]
        for c in range(14):
            hB += [I(f"buffer_load_dwordx4 {vr(HBR+8*c+4*b)}, v{9+b}, {WS}, {sHL} offen sc1", tag=f"hb{c}") for b in range(2)]
            if c < 13:
                hB += [f"s_add_u32 {sHL}, {sHL}, 8192"]
        e, _ = tl.flow(hB, 0, gA[13])
        tl.flow(self.publish(3, "o1"), max(e+1, gA[8]), gA[13]+3)
        for c in range(14):
            g0 = gB[c-3] if c >= 3 else gA[11+c]
            tl.flow([WAIT(vm=f"w2b{c}")] + self.slab_reads(c, bb(c), f"rb{c}"), g0, g0+3, maxds=2)
        sOL, sXO, sNO = "s66", "s67", "s68"
        vRW, vRR_, vSW, vSR, vOut, vO = 2, 5, 6, 11, 12, 18
        t = ["s_mov_b32 s12, s28", "s_mov_b32 s13, s29", f"s_mov_b32 s14, {448*896}", "s_mov_b32 s15, 0x20000",
             "s_mov_b32 s16, s30", "s_mov_b32 s17, s31", "s_mov_b32 s18, 1835008", "s_mov_b32 s19, 0x20000",
             f"s_lshr_b32 s69, {sW4k}, 12",
             f"s_mul_i32 {sW2}, s69, {112*896}", f"s_lshl_b32 s70, {sCT}, 7", f"s_add_u32 {sW2}, {sW2}, s70",
             f"s_lshl_b32 {sOL}, {sRT}, 16", "s_lshl_b32 s71, s69, 13", f"s_add_u32 {sOL}, {sOL}, s71", f"s_add_u32 {sOL}, {sOL}, {OB}",
             "s_and_b32 s71, s69, 1", f"s_lshl_b32 s72, {sRT}, 1", "s_add_u32 s72, s72, s71", f"s_mul_i32 {sXO}, s72, 28672",
             f"s_add_u32 {sXO}, {sXO}, s70", "s_lshr_b32 s72, s69, 1", "s_lshl_b32 s72, s72, 6", f"s_add_u32 {sXO}, {sXO}, s72",
             "s_lshl_b32 s72, s69, 2", f"s_lshl_b32 {sNO}, 0x000f000f, s72",
             "s_lshl_b32 s71, s71, 15", f"v_add_u32 v{vO}, s71, {vL16}", f"v_xor_b32 v{vO+1}, 0x8000, v{vO}",
             "v_and_b32 v13, 31, v0", "v_mul_u32_u24 v13, 896, v13", "v_lshrrev_b32 v12, 5, v0", f"v_lshl_add_u32 v{vOut}, v12, 4, v13"]
        for sg in range(4):
            t += [f"s_xor_b32 s72, s69, {sg}", "s_mul_i32 s73, s72, 12288", f"s_mul_i32 s74, s72, {WREG}", f"s_add_u32 s74, s74, {BIG+16384}",
                  f"v_add_u32 v{vRW+sg-1 if sg else vRR_}, s73, {vL16}", f"v_add_u32 v{vSW+sg-1 if sg else vSR}, s74, {vL16}"]
        XR = 96
        t += [I(f"buffer_load_dwordx4 {vr(XR+4*k)}, v{vOut}, {X}, {sXO} offen offset:{32*k}") for k in range(2)]
        tl.flow(t[:-2], gA[1], gA[13])
        tl.flow(t[-2:], gB[0], gB[1])
        rows = [8*((7*hh) >> 1) + 16*m for hh in range(4) for m in range(2)]
        wo = []
        for k in range(8):
            wo += [At(gB[k]+1)] + self.w2dma(WO, k, f"wo{k}", (rows[k]-rows[k-1])*896 if k else 0)
        tl.flow(wo, gB[0], last)
        pollO = f"buffer_load_dword v29, {vPB}, {WS}, 0 offen offset:128 sc1"
        cmpO = ["v_cmp_eq_u32 vcc, 1, v29", f"s_andn2_b32 vcc_lo, {sNO}, vcc_lo"]
        ol = [At(gB[5]), I(pollO, tag="po"), At(gB[9]), WAIT(vm="po"), self.check("o"+p, pollO, cmpO)]
        for k in range(8):
            ol += [I(f"buffer_load_dwordx4 {vr(OR_+8*k+4*b)}, v{vO+b}, {WS}, {sOL} offen offset:{1024*(k & 3)} sc1", tag=f"ol{k}") for b in range(2)]
            if k == 3:
                ol += [f"s_add_u32 {sOL}, {sOL}, 4096"]
        tl.flow(ol, gB[5], last)
        xr = [f"v_permlane32_swap_b32 v{XR+4*k+e}, v{XR+4*k+e+2}" for k in range(2) for e in range(2)]
        XF = 112
        for k in range(8):
            xr += [f"v_lshlrev_b32 v{XF+2*k}, 16, v{XR+k}", f"v_and_b32 v{XF+2*k+1}, 0xffff0000, v{XR+k}"]
        tl.flow(xr, gB[6], last)
        self.log.append(f"{p} phase4 estimate {tl.estimate()}")
        o += tl.emit()
        o += self.stamp()
        def reduce(acc, vw, vrd, dst, pre=()):
            s = []
            for sg in (1, 2, 3):
                s += [f"ds_write_b128 v{vw+sg-1}, {ar(acc+16*sg+4*k)} offset:{4096*(sg-1)+1024*k}" for k in range(4)]
            s += list(pre)
            s += [f"v_accvgpr_read_b32 v{dst+r}, a{acc+r}" for r in range(16)]
            s += [WAIT(lg=0), "s_barrier"]
            s += [f"ds_read_b128 {vr(dst+16+16*sg+4*k)}, v{vrd} offset:{4096*sg+1024*k}" for k in range(4) for sg in range(3)]
            for k in range(4):
                for e in range(4):
                    r = 4*k + e
                    s += [f"v_add_f32 v{dst+16+r}, v{dst+16+r}, v{dst+32+r}", f"v_add_f32 v{dst+r}, v{dst+r}, v{dst+48+r}"]
                s += [f"v_add_f32 v{dst+4*k+e}, v{dst+4*k+e}, v{dst+16+4*k+e}" for e in range(4)]
            return s
        Bv, Sv = 128, 192
        o += reduce(0, vRW, vRR_, Bv)
        T = Bv + 16
        for k in range(4):
            r = range(4*k, 4*k+4)
            o += [f"v_mul_f32 v{T+e}, {f32(-1/LOG2E)}, v{Bv+e}" for e in r] + [f"v_exp_f32 v{T+e}, v{T+e}" for e in r]
            o += [f"v_add_f32 v{T+e}, 1.0, v{T+e}" for e in r] + [f"v_rcp_f32 v{T+e}, v{T+e}" for e in r]
            o += [f"v_mul_f32 v{Bv+e}, v{Bv+e}, v{T+e}" for e in r]
        o += self.stamp()
        tl = Timeline()
        g5 = [kstep(bb(k), OR_+8*k, ACS, k == 0) for k in range(8)]
        for k in range(8):
            rd = [WAIT(vm=f"wo{k}")] + self.slab_reads(k, bb(k), f"ro{k}")
            if k < 3:
                o += rd
            else:
                tl.flow(rd, g5[k-3], g5[k-3]+3, maxds=2)
            tl.pin(g5[k], [WAIT(vm=f"ol{k}", lg=f"ro{k}")], "pre")
        o += tl.emit()
        o += self.stamp()
        o += reduce(ACS, vSW, vSR, Sv)
        o += [f"v_fma_f32 v{Sv+r}, v{Sv+r}, v{Bv+r}, v{XF+r}" for r in range(16)]
        for qq in range(2):
            n = Sv + 8*qq
            o += [f"v_cvt_pk_bf16_f32 v{n+k}, v{n+2*k}, v{n+2*k+1}" for k in range(4)]
        for qq in range(2):
            n = Sv + 8*qq
            o += [f"v_permlane32_swap_b32 v{n}, v{n+2}", f"v_permlane32_swap_b32 v{n+1}, v{n+3}"]
        o += [f"buffer_store_dwordx4 {vr(Sv+8*qq)}, v{vOut}, {OUT}, {sXO} offen offset:{32*qq}" for qq in range(2)]
        return L(o)

    def profile_dump(self):
        if not self.prof:
            return []
        return self.stamp() + L(["v_accvgpr_read_b32 v20, a250", "s_nop 0", "v_readfirstlane_b32 s2, v20", "s_nop 3", "v_writelane_b32 v21, s2, 63", f"s_lshl_b32 s2, {sFlag}, 6", f"s_add_u32 s2, s2, {PROF}", "v_lshlrev_b32 v20, 2, v0",
                                 f"buffer_store_dword v21, v20, {WS}, s2 offen"])

    def path(self, q):
        st, S = self.stages(q), self.steps(q)
        self.nstamp = 0
        o = self.prologue(q, st, S) + self.stamp() + self.gemm1(q, st, S) + self.stamp()
        o += self.attention(q) + self.stamp()
        if self.stop == "att":
            o += self.publish(3, "o1")
        else:
            o += self.phase4(q)
        o += self.profile_dump() + L(["s_endpgm"])
        return o

    def build(self):
        ent = self.entry()
        text = []
        for q in (False, True):
            log = []
            code, auto, nops = finalize(ent + self.path(q), log)
            self.log += [f"path {'Q' if q else 'G'}: {len(code)} instrs, {auto} auto waits, {nops} nop states"] + log
            if q:
                k = next(i for i, x in enumerate(code) if x.text == "L_Q:")
                code = code[k:]
            text += [x.text for x in code]
        text += [x if isinstance(x, str) else x.text for x in self.slow] + ["L_exit:"]
        head = open(REF).read().split("; @launch")[0]
        body = "\n".join(t if t.endswith(":") else "    " + t for t in text)
        return (head + "; @launch grid=(256,1,1) block=(256,1,1) lds=163840\n"
                f'.amdgcn_target "amdgcn-amd-amdhsa--gfx950"\n.text\n.globl {KNAME}\n.p2align 8\n.type {KNAME},@function\n{KNAME}:\n'
                f"{body}\n    s_endpgm\n"
                f'.section .rodata,"a"\n.p2align 6\n.amdhsa_kernel {KNAME}\n  .amdhsa_next_free_vgpr 512\n  .amdhsa_next_free_sgpr 102\n'
                "  .amdhsa_accum_offset 256\n  .amdhsa_group_segment_fixed_size 0\n  .amdhsa_kernarg_size 80\n"
                "  .amdhsa_user_sgpr_count 2\n  .amdhsa_user_sgpr_kernarg_segment_ptr 1\n  .amdhsa_system_sgpr_workgroup_id_x 1\n"
                ".end_amdhsa_kernel\n")


if __name__ == "__main__":
    import argparse
    ap = argparse.ArgumentParser()
    ap.add_argument("out")
    ap.add_argument("--map", default="8x4")
    ap.add_argument("--stop")
    ap.add_argument("--prof", action="store_true")
    ap.add_argument("-v", action="store_true")
    a = ap.parse_args()
    g = Gen(a.map, a.stop, a.prof)
    open(a.out, "w").write(g.build())
    for l in g.log:
        if a.v or not l.startswith(("nop", "auto")):
            print(l)
```

```python
import math, struct, sys
sys.path.insert(0, "gen")
from fw import *

KNAME = "recurrent_scan__sliding_block__glu_gated_swiglu__prompt_kernel"
REF = "recurrent_scan__sliding_block__glu_gated_swiglu__prompt.s.ref"

def f32(x):
    return "0x%08x" % struct.unpack("<I", struct.pack("<f", x))[0]

LOG2E = math.log2(math.e)
QKV, HB, OB, PROF, OOB = 0x10000, 0x600000, 0xE00000, 0x1800000, 0x10000000
QP, HP, OP = 86016, 114688, 32768
BIG, WREG = 49152, 28672
VBASE = 24576
SPIN = 1 << 16
W2ROW = 128*896

X, WQ, W1, W3, W2, WS = "s[4:7]", "s[8:11]", "s[12:15]", "s[16:19]", "s[20:23]", "s[24:27]"
WO, OUT = "s[12:15]", "s[16:19]"
DBG = "s[32:33]"
MASK0, TABA, TABB = 34, 66, 73
sWB, sH, sKV, sFlag, sW2, sKT, sVT = "s80", "s81", "s82", "s83", "s84", 85, 88
NEEDKV, MASKA, MASKB = "s[90:91]", "s[92:93]", "s[94:95]"
sNQ, sHL, sOst, sW4k, sRT, sCT, sNH = "s96", "s97", "s98", "s99", "s100", "s101", "s0"
tRB, tC, tROT, tW, tI, tJ, tTOK, tP0, tA, tB = ["s%d" % k for k in range(52, 62)]

vL16 = "v1"
ADG, ADG2, ADK, VOG, VOK, ADW, VOW, ADX = 2, 24, 6, 8, 12, 14, 16, 18
QRING, QP0, QP1 = (6, 7, 2), (3, 4, 5), (8, 9, 10)
vRR, vNM = "v18", "v19"
vPA, vPB = "v22", "v23"
SUM, SQ, XOF, CLR = 24, 28, 24, 248
vFO, vOne = "v30", "v31"
XB = 32
ACCA, ACCB, TMP = (144, 160, 176, 192), (144, 160, 176, 208), 224
ABUF, W2A, K8, ST = 64, 112, 208, 224
KVO = 8
ONE0, KRD, VRD, HOF = 8, 12, 6, 18
QF, EM, NEGB = 192, 200, 208
PSLOT = (2048, 16384, 18432, 32768, 34816, 0)
ONES = "a[248:249]"
MF = "v_mfma_f32_32x32x16_bf16"
M4 = "v_mfma_f32_4x4x4_16b_bf16"

def vr(b, n=4): return f"v[{b}:{b+n-1}]"
def ar(b, n=4): return f"a[{b}:{b+n-1}]"

def weave(main, extra, every, start=0):
    out, extra = [], list(extra)
    for k, x in enumerate(main):
        out.append(x)
        if extra and k >= start and (k - start) % every == 0:
            out.append(extra.pop(0))
    return out + extra


class Gen:
    def __init__(self, mapping="8x4", stop=None, prof=False, exp=()):
        self.mapping, self.stop, self.prof, self.exp = mapping, stop, prof, exp
        self.slow = []
        self.nstamp = 0
        self.log = []
        self.names = []

    def stamp(self, name=""):
        if not self.prof:
            return []
        k = self.nstamp
        self.nstamp += 1
        self.names.append(name)
        return [Group(["s_memtime s[2:3]", WAIT(lg=0), f"v_writelane_b32 v21, s2, {k}"])]

    def fine(self, name, early=False):
        if "fine" not in self.exp:
            return []
        k = self.nstamp
        self.nstamp += 1
        self.names.append(name)
        self.finelist.append([f"v_accvgpr_read_b32 v20, a{160+k}", "s_nop 0", "v_readfirstlane_b32 s2, v20", "s_nop 3", f"v_writelane_b32 v21, s2, {k}"])
        return L(["s_memtime vcc", WAIT(lg=0), f"v_accvgpr_write_b32 a{160+k}, vcc_lo"])

    def check(self, name, load, cmpseq):
        self.slow += [f"L_slow_{name}:", f"s_mov_b32 s3, {SPIN}", f"L_spin_{name}:", load, "s_waitcnt vmcnt(0)"] + cmpseq + [
            f"s_cbranch_scc0 L_back_{name}", "s_sub_u32 s3, s3, 1", "s_cmp_lg_u32 s3, 0",
            f"s_cbranch_scc1 L_spin_{name}", f"s_branch L_back_{name}"]
        return Group(cmpseq + [f"s_cbranch_scc1 L_slow_{name}", f"L_back_{name}:"])

    def publish(self, event, tags):
        return [Group([WAIT(vm=tags), I(f"buffer_store_dword {vOne}, {vFO}, {WS}, {sFlag} offen offset:{64*event} sc1")])]

    def entry(self):
        o = ["s_cmp_ge_u32 s2, 256", "s_cbranch_scc1 L_exit",
             "s_load_dwordx2 s[4:5], s[0:1], 0", "s_load_dwordx16 s[36:51], s[0:1], 8",
             "s_load_dwordx2 s[24:25], s[0:1], 72"] + (["s_memtime s[64:65]", "s_memrealtime s[34:35]"] if self.prof else []) + [
             "v_lshrrev_b32 v2, 6, v0", "v_and_b32 v0, 63, v0",
             f"s_and_b32 {tJ}, s2, 7", f"v_readfirstlane_b32 {tW}, v2", f"s_lshr_b32 {tI}, s2, 3"]
        if self.mapping == "8x4":
            o += [f"s_and_b32 {tA}, {tJ}, 1", f"s_lshl_b32 {tA}, {tA}, 3", f"s_and_b32 {tROT}, {tI}, 7",
                  f"s_add_u32 {tRB}, {tA}, {tROT}",
                  f"s_lshr_b32 {tA}, {tJ}, 1", f"s_lshl_b32 {tA}, {tA}, 2", f"s_lshr_b32 {tB}, {tI}, 3",
                  f"s_add_u32 {tC}, {tA}, {tB}", f"s_lshl_b32 {tB}, {tB}, 1", f"s_add_u32 {tROT}, {tROT}, {tB}"]
        elif self.mapping == "4x8":
            o += [f"s_and_b32 {tA}, {tJ}, 3", f"s_lshl_b32 {tA}, {tA}, 2", f"s_and_b32 {tROT}, {tI}, 3",
                  f"s_add_u32 {tRB}, {tA}, {tROT}",
                  f"s_lshr_b32 {tA}, {tJ}, 2", f"s_lshl_b32 {tA}, {tA}, 3", f"s_lshr_b32 {tB}, {tI}, 2",
                  f"s_add_u32 {tC}, {tA}, {tB}", f"s_lshl_b32 {tROT}, {tROT}, 1", f"s_add_u32 {tROT}, {tROT}, {tB}"]
        else:
            raise ValueError(self.mapping)
        o += [f"s_sub_u32 {tA}, {tROT}, 7", f"s_cmp_ge_u32 {tROT}, 7", f"s_cselect_b32 {tROT}, {tA}, {tROT}"]
        if "norot" in self.exp:
            o += [f"s_mov_b32 {tROT}, 0"]
        o += [f"s_lshl_b32 {tTOK}, {tRB}, 2", f"s_add_u32 {tTOK}, {tTOK}, {tW}",
              f"s_mul_i32 {sWB}, {tW}, {WREG}", f"s_add_u32 {sWB}, {sWB}, {BIG}",
              f"s_lshl_b32 {sW4k}, {tW}, 12",
              "s_mov_b32 s6, 1835008", "s_mov_b32 s7, 0x20000", f"s_mov_b32 s26, {OOB}", "s_mov_b32 s27, 0x20000"]
        o += ["v_lshrrev_b32 v2, 3, v0", "v_and_b32 v3, 7, v0", "v_lshrrev_b32 v4, 4, v0", "v_xor_b32 v4, v3, v4",
              "v_mul_u32_u24 v5, 896, v2", "v_lshl_add_u32 v24, v4, 4, v5", "v_xor_b32 v25, 64, v24",
              "v_add_u32 v25, 6144, v25", "v_add_u32 v26, 12288, v24", "v_add_u32 v27, 12288, v25",
              f"v_lshlrev_b32 {vL16}, 4, v0",
              f"s_mul_i32 s3, {tTOK}, 28672", f"s_lshl_b32 s28, {tROT}, 7", "s_add_u32 s28, s28, s3",
              "s_add_u32 s29, s3, 896", "s_mov_b32 s30, s3",
              f"s_cmp_ge_u32 {tC}, 14", "s_cbranch_scc1 L_Q"]
        return L(o)

    def xdma(self, n):
        o = [f"s_add_u32 m0, {sWB}, {4096*n}"]
        if n:
            o += ["s_add_u32 s28, s28, 128", "s_cmp_eq_u32 s28, s29", "s_cselect_b32 s28, s30, s28"]
        else:
            o += ["s_nop 0"]
        o = [Group(o)]
        for i in range(4):
            o.append(I(f"buffer_load_dwordx4 v{XOF+i}, {X}, s28 offen offset:{1024*i} lds", tag=f"x{n}" if i == 3 else None))
        return o

    def stages(self, q):
        st = {}
        def dma(name, loc, items, post):
            m0 = f"s_add_u32 m0, {sW4k}, {16384*loc[1]}" if loc[0] == "ring" else f"s_add_u32 m0, {sWB}, {4096*loc[1]}"
            o = [I(m0)]
            for k, (srd, vo, so, off) in enumerate(items):
                o.append(I(f"buffer_load_dwordx4 v{vo}, {srd}, {so} offen offset:{off} lds", tag=name if k == len(items) - 1 else None))
            st[name] = o + L(post)
        if not q:
            for s in range(4):
                it = [(WQ, VOK, f"s{TABB+2*s}", 0), (WQ, VOK+1, f"s{TABB+2*s}", 1024)]
                if s < 3:
                    it += [(WQ, VOK, f"s{TABB+2*s+1}", 2048), (WQ, VOK+1, f"s{TABB+2*s+1}", 3072)]
                dma(f"K{s}", ("ring", s % 3), it, [])
            for blk in "AB":
                for n in range(7):
                    t = f"s{TABA+n}"
                    dma(f"{blk}{n}", ("part", n), [(W1, VOG, t, 0), (W1, VOG+1, t, 1024), (W3, VOG+2, t, 2048), (W3, VOG+3, t, 3072)],
                        [f"s_add_u32 {t}, {t}, 128"] if blk == "A" else [])
        else:
            for blk in "AB":
                for n in range(7):
                    a, b = f"s{TABA+n}", f"s{TABB+n}"
                    post = [f"s_add_u32 {a}, {a}, s12", f"s_add_u32 {b}, {b}, s13"] if blk == "A" else []
                    dma(f"{blk}{n}", self.qloc(blk, n), [(WQ, VOK, a, 0), (WQ, VOK+1, a, 1024), (WQ, VOK, b, 2048), (WQ, VOK+1, b, 3072)], post)
        return st

    @staticmethod
    def qloc(blk, n):
        if blk == "A":
            return ("ring", n) if n < 3 else ("part", n - 3)
        return ("part", 4 + n) if n < 3 else (("ring", n - 3) if n < 6 else ("part", 0))

    def steps(self, q):
        S = []
        if not q:
            for n in range(7):
                for kp in range(2):
                    S.append([(ar(16*tt, 16), n+kp+b == 0, 4*n+2*kp+b, ADK+tt, 16384*((n >> 1) % 3) + (2*kp+b)*4096 + (n & 1)*2048)
                              for b in range(2) for tt in range(2)])
            for acc in (ACCA, ACCB):
                fr = lambda t, n, ks: (vr(acc[t], 16), n+ks == 0, 4*n+ks, (ADG if ks < 2 else ADG2)+t, (ks & 1)*WREG + 4096*n)
                for n in range(3):
                    for ks in range(4):
                        S.append([fr(t, n, ks) for t in range(4)])
                for t in range(4):
                    for n in range(3, 7):
                        S.append([fr(t, n, ks) for ks in range(4)])
        else:
            def fr(blk, t, n, ks):
                kind, p = self.qloc(blk, n)
                r = (t & 1) if blk == "A" else t
                if kind == "ring":
                    ad, off = QRING[r], 16384*p + 4096*ks
                else:
                    ad, off = (QP0 if ks < 2 else QP1)[r], (ks & 1)*WREG + 4096*p
                acc = ar(16*t, 16) if blk == "A" else vr(ACCB[t], 16)
                return (acc, n+ks == 0, 4*n+ks, ad, off + (t >> 1)*2048)
            for n in range(7):
                for ks in range(4):
                    S.append([fr("A", t, n, ks) for t in range(4)])
            for n in range(3):
                for ks in range(4):
                    S.append([fr("B", t, n, ks) for t in range(3)])
            for t in range(3):
                for n in range(3, 7):
                    S.append([fr("B", t, n, ks) for ks in range(4)])
        return S

    def step_reads(self, S, G):
        o = []
        for f, (_, _, _, ad, off) in enumerate(S[G]):
            for mm in range(2):
                b = ABUF + 16*(G % 3) + 4*f + 2*mm
                o.append(I(f"ds_read_b64_tr_b16 {ar(b, 2)}, v{ad} offset:{off+512*mm}"))
        o[-1].tag = f"R{G}"
        return o

    def center(self, j):
        s = XB + 8*j
        o = [f"v_fma_f32 v{s+e}, v{s+e}, {vRR}, {vNM}" for e in range(8)]
        o += [f"v_cvt_pk_bf16_f32 v{XB+4*j+k}, v{s+2*k}, v{s+2*k+1}" for k in range(4)]
        return o

    def unpack(self, j):
        s = XB + 8*j
        o = []
        for k in range(4):
            o += [f"v_lshlrev_b32 v{s+2*k}, 16, v{s+4+k}", f"v_and_b32 v{s+2*k+1}, 0xffff0000, v{s+4+k}"]
        o[6], o[7] = f"v_lshlrev_b32 v{s+6}, 16, v{s+7}", f"v_and_b32 v{s+7}, 0xffff0000, v{s+7}"
        return o

    def prologue(self, q, st, S):
        o = ["L_Q:"] if q else []
        o += [f"v_lshl_add_u32 v5, {tW}, 4, v2", "v_bfe_u32 v4, v0, 4, 1", "v_lshlrev_b32 v7, 4, v3"]
        o += ["v_lshlrev_b32 v6, 6, v4", "v_xor_b32 v6, v6, v7",
              f"v_mul_u32_u24 v{VOK}, 2688, v5", f"v_add_u32 v{VOK}, v{VOK}, v6", f"v_add_u32 v{VOK+1}, {8*2688-1024}, v{VOK}",
              f"v_mul_u32_u24 v{VOW}, 896, v2", f"v_add_u32 v{VOW}, v{VOW}, v6", f"v_add_u32 v{VOW+1}, 6144, v{VOW}"]
        if not q:
            o += ["v_lshlrev_b32 v6, 5, v4", "v_xor_b32 v6, v6, v7",
                  f"v_mul_u32_u24 v{VOG}, 3584, v5", f"v_add_u32 v{VOG}, v{VOG}, v6",
                  f"v_add_u32 v{VOG+1}, {8*3584-1024}, v{VOG}", f"v_xor_b32 v{VOG+2}, 64, v{VOG}", f"v_xor_b32 v{VOG+3}, 64, v{VOG+1}"]
        o += [f"v_mov_b32 v{CLR+k}, 0" for k in range(4)]
        early, late = self.setup(q)
        o += early
        o += [WAIT(lg=0)] + self.fine("karg", True)
        if not q:
            o += ["s_cmp_lg_u32 s2, 0", "s_cbranch_scc1 L_noclear"]
            o += [I(f"buffer_store_dwordx4 {vr(CLR)}, {vL16}, {WS}, {sW4k} offen offset:{1024*k} sc1", opt=True) for k in range(4)]
            o += ["L_noclear:"]
        NX = 4
        for n in range(NX):
            o += self.xdma(n)
        o += self.fine("xiss", True)
        srds = ["s_sub_u32 s8, s36, 2048", "s_subb_u32 s9, s37, 0", f"s_mov_b32 s10, {448*2688+2048}", "s_mov_b32 s11, 0x20000"]
        if not q:
            srds += ["s_mov_b32 s12, s42", "s_mov_b32 s13, s43", f"s_mov_b32 s14, {448*3584}", "s_mov_b32 s15, 0x20000",
                     "s_sub_u32 s16, s44, 2048", "s_subb_u32 s17, s45, 0", f"s_mov_b32 s18, {448*3584+2048}", "s_mov_b32 s19, 0x20000"]
        o += srds + late + self.fine("setup")
        m0fix = lambda s: [Group([s[0], I("s_nop 0")])] + s[1:]
        w = ("K0", "K1", "K2") if not q else ("A0", "A1", "A2")
        queue = [self.xdma(n) for n in range(NX, 7)] + [m0fix(st[k]) for k in w]
        for n in range(7):
            o += [WAIT(vm=f"x{n}")] + self.fine(f"x{n}")
            for ks in range(4):
                j = 4*n + ks
                o += [I(f"ds_read_b128 {vr(XB+8*j+4)}, v{ADX+ks} offset:{4096*n}", tag=f"xr{j}")]
            if n == 0 and not q:
                o += ["s_cmp_lg_u32 s2, 0", "s_cbranch_scc1 L_nodbg", f"s_lshr_b32 s3, {sW4k}, 10", "v_mov_b32 v254, s3", "v_mov_b32 v255, 1",
                      I(f"global_store_dword v254, v255, {DBG} sc1", opt=True), "L_nodbg:"]
            body = []
            for ks in range(4):
                j = 4*n + ks
                r = XB + 8*j + 4
                u = self.unpack(j - 1) if (ks and n < 6) else []
                cs = "0" if j == 0 else ar(0)
                cq = "0" if j == 0 else vr(SQ)
                body += [WAIT(lg=f"xr{j}"),
                         f"{M4} {ar(0)}, {ONES}, {vr(r, 2)}, {cs}", f"{M4} {vr(SQ)}, {vr(r, 2)}, {vr(r, 2)}, {cq}"] + u[:4]
                body += [f"{M4} {ar(0)}, {ONES}, {vr(r+2, 2)}, {ar(0)}", f"{M4} {vr(SQ)}, {vr(r+2, 2)}, {vr(r+2, 2)}, {vr(SQ)}"] + u[4:]
            if n < 6:
                body += self.unpack(4*n + 3)
            dm = queue.pop(0) if (queue and n < 6) else []
            o += dm[:2] + weave(body, dm[2:], 12, 6)
        assert not queue
        o += [WAIT(vm=w[0]), "s_barrier"] + self.step_reads(S, 0) + self.step_reads(S, 1)
        o += self.fine("bar")
        o += ["s_mov_b32 vcc_lo, 0xaaaaaaaa", "s_mov_b32 vcc_hi, 0xaaaaaaaa", "s_mov_b32 s2, 0xcccccccc", "s_mov_b32 s3, 0xcccccccc"]
        fill = sum((self.unpack(j) for j in range(24, 28)), [])
        take = lambda k: [fill.pop(0) for _ in range(min(k, len(fill)))]
        SM = SUM
        o += [f"v_cndmask_b32 v{SQ}, v{SQ}, v{SQ+1}, vcc", f"v_cndmask_b32 v{SQ+2}, v{SQ+2}, v{SQ+3}, vcc",
              f"v_accvgpr_read_b32 v{SM}, a0", f"v_accvgpr_read_b32 v{SM+1}, a0", f"v_cndmask_b32 v{SQ}, v{SQ}, v{SQ+2}, s[2:3]"] + take(1)
        o += [f"v_mov_b32 v{SQ+1}, v{SQ}", f"v_permlane32_swap_b32 v{SM}, v{SM+1}"] + take(1)
        o += [f"v_permlane32_swap_b32 v{SQ}, v{SQ+1}", f"v_add_f32 v{SM}, v{SM}, v{SM+1}", f"v_add_f32 v{SQ}, v{SQ}, v{SQ+1}",
              f"v_mul_f32 v{SM}, {f32(-1/448)}, v{SM}", f"v_mul_f32 v{SQ}, {f32(1/448)}, v{SQ}",
              f"v_fma_f32 v{SQ}, -v{SM}, v{SM}, v{SQ}", f"v_max_f32 v{SQ}, 0, v{SQ}",
              f"v_add_f32 v{SQ}, {f32(1e-5)}, v{SQ}", f"v_rsq_f32 v{SQ}, v{SQ}"] + take(1)
        o += [f"v_mul_f32 {vRR}, {f32(LOG2E)}, v{SQ}", f"v_mul_f32 {vNM}, v{SM}, {vRR}"]
        o += self.center(0) + self.center(1)
        self.fill = fill
        return L(o)

    def setup(self, q):
        e = []
        e += [f"s_mov_b32 s1, {tROT}"]
        if not q:
            e += [f"s_lshl_b32 {tP0}, {tC}, 8", f"s_lshl_b32 s62, {tC}, 7", "s_add_u32 s62, s62, 896"]
        else:
            e += [f"s_cmp_eq_u32 {tC}, 14", f"s_cselect_b32 {tP0}, 0, 640", f"s_add_u32 s62, {tP0}, 128", f"s_add_u32 {tP0}, {tP0}, 2048",
                  f"s_cmp_eq_u32 {tC}, 14", "s_cselect_b32 s12, 384, 0", "s_cselect_b32 s13, 640, 0", "s_sub_u32 s12, s12, 128", "s_sub_u32 s13, s13, 384"]
        for n in range(7):
            if not q:
                e += [f"s_mul_i32 s{TABA+n}, s1, {64*3584}", f"s_add_u32 s{TABA+n}, s{TABA+n}, {tP0}",
                      f"s_mul_i32 s{TABB+n}, s1, {64*2688}", f"s_add_u32 s{TABB+n}, s{TABB+n}, s62"]
                if n % 2 == 0:
                    e += [f"s_add_u32 s{TABB+n}, s{TABB+n}, 2048"]
            else:
                e += [f"s_mul_i32 s{TABB+n}, s1, {64*2688}", f"s_add_u32 s{TABA+n}, s{TABB+n}, {tP0}",
                      f"s_add_u32 s{TABB+n}, s{TABB+n}, s62"]
            if n < 6:
                e += ["s_add_u32 s1, s1, 1", "s_cmp_eq_u32 s1, 7", "s_cselect_b32 s1, 0, s1"]
        e += ["v_lshrrev_b32 v240, 5, v0", "v_bfe_u32 v241, v0, 4, 1", "v_bfe_u32 v242, v0, 2, 2", "v_and_b32 v243, 3, v0",
              "v_and_b32 v244, 31, v0", "v_bfe_u32 v245, v0, 3, 1",
              "v_lshlrev_b32 v246, 7, v242", "v_lshl_add_u32 v246, v243, 3, v246",
              "v_lshl_add_u32 v247, v245, 1, v241", "v_lshl_add_u32 v247, v247, 5, v246",
              f"v_lshl_add_u32 v{ADK}, v240, 10, v247", f"v_xor_b32 v{ADK+1}, 64, v{ADK}",
              f"v_lshl_add_u32 v{ADW}, v240, 9, v247", f"v_add_u32 v{ADW}, {sWB}, v{ADW}",
              f"s_lshr_b32 {tA}, {tW}, 1", f"s_lshl_b32 {tA}, {tA}, 6", f"v_xor_b32 v{ADW}, {tA}, v{ADW}", f"v_xor_b32 v{ADW+1}, 64, v{ADW}"]
        if not q:
            e += ["v_lshl_add_u32 v247, v241, 1, v245", "v_lshl_add_u32 v247, v247, 5, v246", "v_lshl_add_u32 v247, v240, 10, v247",
                  "v_lshl_add_u32 v247, v241, 11, v247", f"v_add_u32 v{ADG}, {BIG}, v247"] + [f"v_xor_b32 v{ADG+t}, {32*t}, v{ADG}" for t in (1, 2, 3)]
        else:
            e += [f"s_and_b32 {tA}, {tC}, 1", f"s_lshl_b32 {tA}, {tA}, 6", f"v_xor_b32 v{QRING[2]}, {tA}, v{ADK}"]
            e += [f"v_add_u32 v{QP0[r]}, {BIG}, v{QRING[r]}" for r in range(3)]
            e += [f"v_add_u32 v{QP1[r]}, {BIG+2*WREG}, v{QRING[r]}" for r in range(3)]
        e += ["v_bfe_u32 v247, v0, 1, 3", "v_xor_b32 v247, v247, v240", "v_lshlrev_b32 v247, 4, v247",
              f"v_lshl_add_u32 v{ADX}, v244, 7, v247", f"v_add_u32 v{ADX}, {sWB}, v{ADX}"]
        e += [f"v_xor_b32 v{ADX+k}, {32*k}, v{ADX}" for k in (1, 2, 3)]
        e += ["v_mov_b32 v247, 0x3f803f80", "v_accvgpr_write_b32 a248, v247", "v_accvgpr_write_b32 a249, v247"]
        o = []
        o += ["s_mov_b32 s20, s46", "s_mov_b32 s21, s47", f"s_cmp_lt_u32 {tI}, 28", f"s_cselect_b32 s22, {0 if 'now2' in self.exp else 1792*896}, 0",
              f"s_cselect_b32 {sNH}, 0x3fff3fff, 0", "s_mov_b32 s23, 0x20000",
              "s_mov_b32 s32, s50", "s_mov_b32 s33, s51"]
        o += [f"s_and_b32 {tA}, {tI}, 3", f"s_lshl_b32 {sRT}, {tJ}, 2", f"s_add_u32 {sRT}, {sRT}, {tA}", f"s_lshr_b32 {sCT}, {tI}, 2",
              f"s_mul_i32 {tP0}, {tC}, 7", f"s_lshr_b32 {tP0}, {tP0}, 1",
              f"s_mul_i32 {sH}, {tTOK}, {HP}", f"s_lshl_b32 {tA}, {tC}, 13", f"s_add_u32 {sH}, {sH}, {tA}", f"s_add_u32 {sH}, {sH}, {HB}",
              f"s_mul_i32 {tB}, {tTOK}, {QP}", f"s_add_u32 {tB}, {tB}, {QKV}"]
        if not q:
            o += [f"s_lshl_b32 {tA}, {tC}, 12", f"s_add_u32 {sKV}, {tB}, {tA}", f"s_add_u32 {sKV}, {sKV}, {56*512}"]
        else:
            o += [f"s_cmp_eq_u32 {tC}, 14", f"s_cselect_b32 {tA}, 0, {40*512}", f"s_add_u32 {sKV}, {tB}, {tA}",
                  f"s_cmp_eq_u32 {tC}, 14", f"s_cselect_b32 {tA}, 16, 32", f"s_lshl_b32 {tA}, {tA}, 9", f"s_add_u32 s14, {tB}, {tA}",
                  f"s_cmp_eq_u32 {tC}, 14", f"s_cselect_b32 {tA}, 24, 28", f"s_lshl_b32 {tA}, {tA}, 9", f"s_add_u32 s15, {tB}, {tA}"]
        if "nost" in self.exp:
            o += [f"s_mov_b32 {sH}, {OOB}", f"s_mov_b32 {sKV}, {OOB}"]
        o += [f"s_lshl_b32 {sFlag}, {tTOK}, 8", f"s_lshl_b32 {tA}, {tC}, 2", f"s_add_u32 {sFlag}, {sFlag}, {tA}",
              f"s_mul_i32 {sW2}, {tW}, {16*896}", f"s_lshl_b32 {tA}, {sCT}, 7", f"s_add_u32 {sW2}, {sW2}, {tA}",
              f"s_lshl_b32 {tA}, {tP0}, 9", f"s_add_u32 {tA}, {tA}, {56*512}",
              f"s_add_u32 s{sKT+2}, {tB}, {tA}", f"s_add_u32 {tA}, {tA}, {QKV}"]
        for pp in (0, 1):
            o += [f"s_sub_u32 s{sKT+pp}, s{sKT+2}, {(2-pp)*4*QP}", f"s_add_u32 s{sVT+pp}, s{sKT+pp}, {56*512}",
                  f"s_cmp_ge_u32 {tRB}, {2-pp}", f"s_cselect_b32 s{sKT+pp}, s{sKT+pp}, {tA}", f"s_cselect_b32 s{sVT+pp}, s{sVT+pp}, {OOB}"]
        o += [f"s_lshr_b32 {tA}, {tP0}, 3", f"s_lshl_b32 s91, 0x81, {tA}", f"s_add_u32 {tA}, {tP0}, 3", f"s_lshr_b32 {tA}, {tA}, 3",
              f"s_lshl_b32 {tA}, 0x81, {tA}", f"s_or_b32 s91, s91, {tA}", "s_mul_i32 s90, s91, 0x10001",
              f"s_cmp_ge_u32 {tC}, 8", f"s_cselect_b32 {sNQ}, 2, 1",
              f"s_lshl_b32 {sNQ}, {sNQ}, 14",
              f"s_bitcmp1_b32 {tC}, 0", "s_cselect_b32 s92, -1, 0", "s_mov_b32 s93, 0", "s_mov_b32 s94, 0", "s_cselect_b32 s95, 0, -1",
              f"s_mul_i32 {sHL}, {sRT}, {2*HP}", f"s_lshl_b32 {tA}, {tW}, 10", f"s_add_u32 {sHL}, {sHL}, {tA}", f"s_add_u32 {sHL}, {sHL}, {HB}",
              f"s_lshl_b32 {sOst}, {tTOK}, 15", f"s_lshl_b32 {tA}, {tC}, 11", f"s_add_u32 {sOst}, {sOst}, {tA}", f"s_add_u32 {sOst}, {sOst}, {OB}"]
        o += ["v_lshrrev_b32 v246, 4, v0", "v_min_u32 v246, 2, v246", f"s_sub_u32 {tA}, {tTOK}, 8",
              f"v_lshl_add_u32 v246, v246, 2, {tA}", "v_max_i32 v246, 0, v246", "v_and_b32 v247, 15, v0", "v_lshlrev_b32 v247, 2, v247",
              f"v_lshl_add_u32 {vPA}, v246, 8, v247",
              f"s_lshl_b32 {tA}, {sRT}, 9", f"s_add_u32 {tA}, {tA}, 64", "v_lshl_add_u32 v247, v241, 8, v247", "v_lshl_add_u32 v247, v240, 6, v247",
              f"v_add_u32 {vPB}, {tA}, v247"]
        W = lambda k, v: f"v_accvgpr_write_b32 a{ST+k}, v{v}"
        o += ["v_lshlrev_b32 v238, 9, v240", "v_lshlrev_b32 v246, 2, v240", "v_xor_b32 v246, v246, v244",
              "v_lshl_add_u32 v236, v246, 4, v238", "v_xor_b32 v237, 128, v236", W(0, 236), W(1, 237)]
        for pp in (0, 1):
            o += [f"s_cmp_ge_u32 {tRB}, {2-pp}", "s_cselect_b64 vcc, -1, 0",
                  "v_cndmask_b32 v246, v238, v236, vcc", "v_cndmask_b32 v247, v238, v237, vcc", W(2+2*pp, 246), W(3+2*pp, 247)]
        o += [f"s_lshl_b32 {tA}, {tW}, 11", f"v_add_u32 v246, {tA}, v236", f"v_add_u32 v247, {tA}, v237", W(6, 246), W(7, 247),
              f"s_add_u32 {tA}, {tA}, {VBASE}",
              "v_lshrrev_b32 v246, 1, v243", "v_lshl_add_u32 v246, v241, 1, v246",
              "v_lshl_add_u32 v247, v240, 2, v242", "v_lshlrev_b32 v239, 2, v246", "v_xor_b32 v247, v247, v239",
              "v_lshlrev_b32 v247, 4, v247", "v_lshl_add_u32 v247, v246, 9, v247", "v_and_b32 v246, 1, v0", "v_lshl_add_u32 v247, v246, 3, v247",
              f"v_add_u32 v247, {tA}, v247", W(8, 247), "v_xor_b32 v247, 128, v247", W(9, 247),
              f"s_bitcmp1_b32 {tC}, 0", f"s_cselect_b32 {tB}, 0, {3*512+8}", f"s_add_u32 {tA}, {tA}, {tB}",
              f"v_lshl_add_u32 v246, v244, 4, {tA}", "v_lshl_add_u32 v247, v240, 13, v246", W(10, 247),
              "v_add_u32 v246, 16384, v246", W(11, 246),
              f"v_add_u32 v246, {tRB}, v240", "v_cmp_le_u32 vcc, 2, v246", "v_mov_b32 v247, 0x3f803f80", "s_nop 0",
              "v_cndmask_b32 v247, 0, v247, vcc", W(12, 247),
              f"s_and_b32 {tA}, {tW}, 1", f"s_mul_i32 {tB}, {tA}, {HP}", f"v_add_u32 v246, {tB}, {vL16}", W(13, 246),
              f"s_sub_u32 {tB}, {HP}, {tB}", f"v_add_u32 v246, {tB}, {vL16}", W(14, 246),
              "v_cmp_eq_u32 vcc, 0, v0", f"v_mov_b32 v247, {OOB}", "s_nop 0", "v_cndmask_b32 v247, v247, v0, vcc", W(15, 247),
              "v_lshlrev_b32 v246, 2, v240", "v_sub_u32 v246, v244, v246", "v_mov_b32 v238, 0xffff", "v_mov_b32 v239, 0xffff0000"]
        for d in range(8):
            k0 = 8*(d >> 1) + 2*(d & 1)
            o += [f"v_cmp_le_i32 vcc, {k0}, v246", f"v_cmp_le_i32 s[62:63], {k0+1}, v246", "s_nop 0",
                  "v_cndmask_b32 v236, 0, v238, vcc", "v_cndmask_b32 v237, 0, v239, s[62:63]", "v_or_b32 v236, v236, v237", W(16+d, 236)]
        if self.prof:
            o += ["v_mov_b32 v236, s64", "v_accvgpr_write_b32 a250, v236", "v_mov_b32 v236, s34", "v_accvgpr_write_b32 a251, v236"]
        self.ptrmove = ["s_mov_b32 s28, s38", "s_mov_b32 s29, s39", "s_mov_b32 s30, s48", "s_mov_b32 s31, s49"]
        return e, o

    def masks(self):
        o = []
        for r in range(16):
            k0 = 8*(r >> 2) + (r & 3)
            o += [f"s_mov_b32 s{MASK0+2*r}, 0x{(0xffffffff << k0) & 0xffffffff:x}",
                  f"s_mov_b32 s{MASK0+2*r+1}, 0x{(0xffffffff << (k0+4)) & 0xffffffff:x}"]
        return o

    def epi_gu(self, b, t, tag):
        o = []
        for half in range(2):
            g, u = b+4*half, b+8+4*half
            o += [f"v_mul_f32 v{u+e}, v{g+e}, v{u+e}" for e in range(4)]
            o += [f"v_exp_f32 v{g+e}, -v{g+e}" for e in range(4)]
            o += [f"v_add_f32 v{g+e}, 1.0, v{g+e}" for e in range(4)]
            o += [f"v_rcp_f32 v{g+e}, v{g+e}" for e in range(4)]
            o += [f"v_mul_f32 v{u+e}, v{g+e}, v{u+e}" for e in range(4)]
            o += [f"v_cvt_pk_bf16_f32 v{b+2*half+k}, v{u+2*k}, v{u+2*k+1}" for k in range(2)]
        o += [I(f"buffer_store_dwordx4 {vr(b)}, {vL16}, {WS}, {sH} offen offset:{1024*t} sc1", tag=tag)]
        return o

    def epi_qkv(self, src, tmp, scale, soff, off, tag):
        o = []
        base = tmp if tmp else src
        for qq in range(2):
            n = base + 8*qq
            if tmp:
                o += [f"v_accvgpr_read_b32 v{n+e}, a{src+8*qq+e}" for e in range(8)]
            if scale:
                o += [f"v_mul_f32 v{n+e}, {f32(28**-0.5/LOG2E)}, v{n+e}" for e in range(8)]
            o += [f"v_cvt_pk_bf16_f32 v{n+k}, v{n+2*k}, v{n+2*k+1}" for k in range(4)]
        for qq in range(2):
            n = base + 8*qq
            o += [f"v_permlane32_swap_b32 v{n}, v{n+2}", f"v_permlane32_swap_b32 v{n+1}, v{n+3}"]
        for qq in range(2):
            n = base + 8*qq
            o += [I(f"buffer_store_dwordx4 {vr(n)}, {vL16}, {WS}, {soff} offen offset:{off+1024*qq} sc1", tag=tag if qq else None)]
        return o

    def slabdma(self, srd, base, lds, tag, adv, so=sW2):
        return [Group([f"s_add_u32 m0, {base}, {lds}", f"s_add_u32 {so}, {so}, {adv & 0xffffffff}" if adv else "s_nop 0"]),
                I(f"buffer_load_dwordx4 v{VOW}, {srd}, {so} offen lds"),
                I(f"buffer_load_dwordx4 v{VOW+1}, {srd}, {so} offen offset:1024 lds", tag=tag)]

    def w2b(self, i):
        return self.slabdma(W2, sWB, 2048*i, f"w2b{i}", W2ROW if i else 64*896 - 11*W2ROW)

    def slab_reads(self, ad, lds, dst, tag):
        o = [I(f"ds_read_b64_tr_b16 {ar(dst+4*tt+2*mm, 2)}, v{ad+tt} offset:{lds+1024*mm}") for tt in range(2) for mm in range(2)]
        o[-1].tag = tag
        return o

    def kvdma(self, which, pp):
        base = (0 if which == "K" else VBASE) + 8192*pp
        vo = (KVO + 2 + 2*pp if (which == "K" and pp < 2) else KVO)
        pre = [f"s_add_u32 m0, s1, {base}"]
        if which == "K":
            so = f"s{sKT+pp}"
            pre += ["s_nop 0"]
        elif pp < 2:
            so = f"s{sVT+pp}"
            pre += ["s_nop 0"]
        else:
            so = f"s{sVT}"
            pre += [f"s_add_u32 {so}, s{sKT+2}, {56*512}"]
        return [Group(pre), I(f"buffer_load_dwordx4 v{vo}, {WS}, {so} offen sc1 lds"),
                I(f"buffer_load_dwordx4 v{vo+1}, {WS}, {so} offen offset:1024 sc1 lds", tag=f"{which}t{pp}")]

    def kv_all(self):
        return [f"s_lshr_b32 s1, {sW4k}, 1"] + sum((self.kvdma(w_, pp) for w_ in "KV" for pp in range(3)), [])

    POLLKV = f"buffer_load_dword v28, {vPA}, {WS}, 0 offen sc1"
    CMPKV = ["v_cmp_eq_u32 vcc, 1, v28", f"s_andn2_b64 vcc, {NEEDKV}, vcc"]
    CMPQ = ["v_cmp_eq_u32 vcc, 1, v28", f"s_andn2_b32 vcc_lo, {sNQ}, vcc_hi"]
    POLLH = f"buffer_load_dword v29, {vPB}, {WS}, 0 offen sc1"
    CMPHA = ["v_cmp_eq_u32 vcc, 1, v29", f"s_andn2_b32 vcc_lo, {sNH}, vcc_lo"]
    CMPHB = ["v_cmp_eq_u32 vcc, 1, v29", f"s_andn2_b32 vcc_lo, {sNH}, vcc_hi"]

    def rest(self, v, k, n=1):
        return [f"v_accvgpr_read_b32 v{v+i}, a{ST+k+i}" for i in range(n)]

    def qload(self):
        return [f"s_sub_u32 s1, s{sKT+2}, {56*512}"] + [
            I(f"buffer_load_dwordx4 {vr(QF+4*ks)}, {vL16}, {WS}, s1 offen offset:{1024*ks} sc1", tag=f"ql{ks}") for ks in range(2)]

    def qmask(self):
        return [WAIT(vm="ql1"), f"v_cndmask_b32 v{QF}, v{QF}, 0, {MASKA}", f"v_cndmask_b32 v{QF+1}, v{QF+1}, 0, {MASKA}",
                f"v_cndmask_b32 v{QF+6}, v{QF+6}, 0, {MASKB}", f"v_cndmask_b32 v{QF+7}, v{QF+7}, 0, {MASKB}"]

    def ones(self):
        return [WAIT(vm="Vt2"), f"ds_write_b32 v{ONE0}, v{ONE0+2}", f"ds_write_b32 v{ONE0+1}, v{ONE0+3}"]

    def att_restore(self):
        return self.rest(ONE0, 10, 3) + [f"v_mov_b32 v{ONE0+3}, 0x3f803f80"] + self.rest(KRD, 6, 2) + self.rest(VRD, 8, 2)

    def hload(self, c, dst, tag, adv):
        o = [I(f"buffer_load_dwordx4 {vr(dst+4*b)}, v{HOF+b}, {WS}, {sHL} offen sc1", tag=tag) for b in range(2)]
        return o + ([f"s_add_u32 {sHL}, {sHL}, {adv & 0xffffffff}"] if adv else [])

    def ha(self, c):
        return self.hload(c, XB+8*c, f"hl{c}", 8192 if c < 13 else 4096-13*8192)

    ORDER = [0, 8, 1, 2, 3, 4, 5, 6, 7]
    kreg = staticmethod(lambda i: K8 if i == 8 else 8*i)

    def kreads(self):
        return [I(f"ds_read_b128 {ar(self.kreg(i)+4*ks)}, v{KRD+ks} offset:{2048*i+1024*ks}", tag=f"kr{i}" if ks else None)
                for i in self.ORDER for ks in range(2)]

    def gemm1(self, q, st, S):
        p = "Q" if q else "G"
        tl = Timeline()
        first = []
        for G, fr in enumerate(S):
            for f, (acc, z, j, _, _) in enumerate(fr):
                g = tl.add(f"{MF} {acc}, {ar(ABUF+16*(G % 3)+4*f)}, {vr(XB+4*j)}, {'0' if z else acc}")
                if f == 0:
                    first.append(g)
        NS = len(S)
        first.append(len(tl.m))
        F = lambda G, k=0: first[G] + k
        if not q:
            bars = {2: "K1", 6: "K2", 10: "A2", 24: "A6", 40: "B2", 52: "B6", 68: None}
        else:
            bars = {2: "A1", 6: "A2", 10: "A4", 18: "A6", 26: "B2", 38: "B6", 50: None}
        bg = {}
        for G in range(NS):
            g0, w = first[G], first[G+1] - first[G]
            tl.pin(g0, [WAIT(lg=f"R{G}")], "pre")
            if G in bars:
                gb = g0 + (1 if w == 4 else 0)
                pre, post = [], []
                if self.prof:
                    pre, post = ["s_memtime s[2:3]"], [f"v_writelane_b32 v21, s2, {self.nstamp}"]
                    self.nstamp += 1
                    self.names.append(f"b{G}")
                tl.pin(gb, pre + [WAIT(vm=bars[G], lg=0), "s_barrier"] + post)
                bg[G] = gb
            if G + 2 < NS:
                rd = self.step_reads(S, G+2)
                if w == 4:
                    cnt = (0, 2, 3, 3) if G in bars else (3, 3, 2, 0)
                else:
                    cnt = (2, 3, 3) if G in bars else (3, 3, 2)
                k = 0
                for gg, c in enumerate(cnt):
                    tl.pin(g0+gg, rd[k:k+c], "mem")
                    k += c
                assert k >= len(rd)
        last = len(tl.m) - 1
        info = []
        def flow(s, a, b, name, **k):
            e, bud = tl.flow(s, a, b, name=name, **k)
            info.append((name, e, bud))
            return e
        grp = lambda s: [Group([s[0], "s_nop 0"])] + s[1:]
        post = self.rest(30, 15) + [f"v_mov_b32 {vOne}, 1"] + self.ptrmove
        dbgload = f"global_load_dwordx4 v[208:211], v20, {DBG} sc1"
        dbgcmp = ["v_and_b32 v208, v208, v209", "v_and_b32 v210, v210, v211", "v_and_b32 v208, v208, v210", "v_cmp_ne_u32 vcc, 1, v208", "s_cmp_lg_u64 vcc, 0"]
        if not q:
            s = grp(st["A0"]) + [At(F(1))] + grp(st["A1"]) + [At(bg[2]+1)] + grp(st["K3"]) + [At(F(3, 2))] + grp(st["A2"])
            for k in range(3, 7):
                s += [At(F(2*k-1))] + grp(st[f"A{k}"])
            flow(s, 0, F(14)-1, "dmaA", budget=40)
            g = 0
            fill = self.fill
            for j in range(2, 28):
                pre = fill[:] if j == 14 else []
                g, b = tl.flow(pre + self.center(j), g, F(j//2)-2 + 2*(j & 1), budget=44, name=f"center{j}")
            flow(post + [f"v_add_u32 v{ADG2+t}, {2*WREG}, v{ADG+t}" for t in range(4)], F(9), F(12)-1, "post", budget=44)
            sK = sum((self.epi_qkv(16*tt, TMP+16*tt, False, sKV, 2048*tt, f"kv{tt}") for tt in range(2)), [])
            eK = flow(sK, F(14, 2), F(19), "epiK")
            flow(["v_mov_b32 v20, 0", I(dbgload, tag="dbg"), At(F(22)), WAIT(vm="dbg"), self.check("dbg"+p, dbgload, dbgcmp)], F(14), F(23, 3), "dbg")
            flow([f"s_sub_u32 s1, {sW4k}, {sWB}"] + [f"v_add_u32 v{ADK+k}, s1, v{ADW+k}" for k in range(2)] + self.masks(), F(14), F(24), "misc")
            w2a = lambda i: self.slabdma(W2, sW4k, PSLOT[i % 6], f"w2a{i}", W2ROW if i else 0)
            rdA = lambda i: [WAIT(vm=f"w2a{i}")] + self.slab_reads(ADK, PSLOT[i % 6], W2A+8*i, f"w2r{i}")
            flow(sum((w2a(i) for i in range(5)), []), eK+1, F(24), "w2a0")
            e = flow(grp(st["B0"]) + w2a(5) + [At(F(25, 2))] + self.publish(0, "kv1") + grp(st["B1"]) + grp(st["B2"]), bg[24]+1, F(30), "dmaB0")
            s = []
            for i in range(5):
                s += [At(F(30+i))] + rdA(i)
                if i:
                    s += [WAIT(lg=f"w2r{i-1}")] + w2a(5+i)
            s += [At(F(35)), WAIT(lg="w2r4")] + w2a(10) + rdA(5) + [At(F(37)), WAIT(lg="w2r5")] + w2a(11)
            flow(s, max(e+1, F(30)), F(40)-1, "w2a1", budget=28)
            for t in range(3):
                flow(self.epi_gu(ACCA[t], t, f"hA{t}"), F(30+4*t, 2), F(34+4*t, 1 if t < 2 else -1), f"epiA{t}", budget=28)
            e = flow(sum((grp(st[f"B{k}"]) for k in range(3, 7)), []) + [I(self.POLLKV, tag="pkv")], bg[40]+1, F(47), "dmaB3")
            flow(self.epi_gu(ACCA[3], 3, "hA3") + [f"s_add_u32 {sH}, {sH}, 4096"], F(42, 2), F(47), "epiA3")
            flow(sum((rdA(i) for i in range(6, 12)), []), F(46), F(52)-1, "w2r6")
            flow([At(e+1)] + self.rest(KVO, 0, 6) + self.rest(EM, 16, 8) + self.rest(HOF, 13, 2) + [At(F(50)), WAIT(vm="pkv"), self.check("kv"+p, self.POLLKV, self.CMPKV)],
                 F(47), F(52), "pollkv")
            e = flow(self.publish(1, "hA3") + self.kv_all() + sum((self.w2b(i) for i in range(6)), []), bg[52]+1, F(60), "kvdma")
            for t in range(2):
                flow(self.epi_gu(ACCB[t], t, f"hB{t}"), F(58+4*t, 2), F(62+4*t, 1), f"epiB{t}", budget=28)
            flow([At(e+1)] + self.att_restore() + [At(F(60)), I(self.POLLKV, tag="pq"), At(F(64)), WAIT(vm="pq"), self.check("q"+p, self.POLLKV, self.CMPQ)]
                 + self.qload() + [I(self.POLLH, tag="ph"), At(F(66, 2))] + self.ones(), F(57), F(68), "pollq", budget=28)
            kr = self.kreads()
            flow(kr[:14], bg[68]+1, last, "kr", maxds=3)
            self.pass1(tl, flow, last, kr[14:], q)
        else:
            s = []
            for k in range(3, 7):
                s += [At(F(2*(k-3)))] + grp(st[f"A{k}"])
            for k in range(7):
                s += [At(max(F(8+2*k), bg[18]+1 if k == 6 else 0))] + grp(st[f"B{k}"])
            flow(s, 0, F(24), "dmaQ", budget=28)
            g = 0
            for j in range(2, 28):
                pre = self.fill[:] if j == 14 else []
                g, b = tl.flow(pre + self.center(j), g, F(j)-2, name=f"center{j}")
            flow(post + self.masks(), F(20), F(28), "post")
            flow(["v_mov_b32 v20, 0", I(dbgload, tag="dbg"), At(F(33)), WAIT(vm="dbg"), self.check("dbg"+p, dbgload, dbgcmp)], F(28), F(35), "dbg")
            sA = []
            for t in range(4):
                sA += self.epi_qkv(16*t, TMP+16*(t & 1), True, sKV, 2048*(t & 1), f"q{t}")
                if t == 1:
                    sA += [f"s_add_u32 {sKV}, {sKV}, 4096"]
            flow(sA, F(28, 2), F(44), "epiQA", budget=28)
            w2a = lambda i: self.slabdma(W2, sWB, 2048*(i+2), f"w2a{i}", W2ROW if i else 0)
            self.rdA = lambda i: [WAIT(vm=f"w2a{i}")] + self.slab_reads(ADW, 2048*(i+2), W2A+8*i, f"w2r{i}")
            flow([At(F(22))] + w2a(0) + w2a(1) + [At(bg[26]+1)] + sum((w2a(i) for i in range(2, 6)), []) + [At(bg[38]+1)]
                 + sum((w2a(i) for i in range(6, 12)), []) + [I(self.POLLKV, tag="pkv"), At(F(48)), WAIT(vm="pkv"), self.check("kv"+p, self.POLLKV, self.CMPKV)],
                 F(22), F(50), "w2a", budget=28)
            qb = (("s14", 0), ("s14", 2048), ("s15", 0))
            for t in range(2):
                flow(self.epi_qkv(ACCB[t], None, True, qb[t][0], qb[t][1], f"q{4+t}"), F(44+4*t, 2), min(F(48+4*t, 1), last), f"epiQB{t}", budget=28)
            flow(self.rest(KVO, 0, 6) + self.kv_all(), bg[50]+1, last, "kvdma", budget=40)
        self.log.append(f"{p} gemm1 estimate {tl.estimate()} cycles; {info}")
        o = tl.emit()
        if q:
            o += self.stamp("g1")
            o += L(self.epi_qkv(ACCB[2], None, True, "s15", 0, "q6"))
            o += L(self.rest(EM, 16, 8) + self.rest(HOF, 13, 2) + self.att_restore())
            o += L(sum((self.rdA(i) for i in range(12)), []))
            o += self.publish(0, "q6")
            o += L([I(self.POLLKV, tag="pq"), WAIT(lg=0)] + sum((self.w2b(i) for i in range(6)), []))
            o += L(self.ones() + [WAIT(lg=0), "s_barrier"] + self.kreads())
            o += L([WAIT(vm="pq"), self.check("q"+p, self.POLLKV, self.CMPQ)] + self.qload() + [I(self.POLLH, tag="ph")])
            tl = Timeline()
            self.pass1(tl, lambda s, a, b, name, **k: tl.flow(s, a, b, name=name, **k)[0], -1, [], q)
            o += L(self.pre1) + tl.emit()
        o += self.tail1
        return o

    def pass1(self, tl, flow, last, kr, q):
        p = "Q" if q else "G"
        sb = [144, 160, 224, 240, 176]
        buf = {i: sb[k % 5] for k, i in enumerate(self.ORDER)}
        done = {}
        p0 = last + 1
        for i in self.ORDER:
            g = tl.add(f"{MF} {vr(buf[i], 16)}, {ar(self.kreg(i))}, {vr(QF)}, 0")
            tl.pin(g, [WAIT(lg=f"kr{i}")], "pre")
            done[i] = tl.add(f"{MF} {vr(buf[i], 16)}, {ar(self.kreg(i)+4)}, {vr(QF+4)}, {vr(buf[i], 16)}")
        end = len(tl.m) - 1
        merge = lambda a, b: [f"v_cndmask_b32 v{a+r}, v{a+r}, v{b+r}, s[{MASK0+2*r}:{MASK0+2*r+1}]" for r in range(16)]
        self.merge = merge
        def mx(b, init):
            s = []
            for k in range(8):
                m = 2 + (k & 1)
                s.append(f"v_max3_f32 v{m}, v{b+2*k}, v{b+2*k+1}, v{b+2*k if init and k < 2 else m}")
            return s
        hchk = [WAIT(vm="ph"), self.check("ha"+p, self.POLLH, self.CMPHA)]
        if not q:
            flow(self.epi_gu(ACCB[2], 2, "hB2"), last-13, p0+1, "epiB2", budget=28)
            tl.pin(last, self.qmask(), "tail")
            for k, x in enumerate(kr):
                tl.pin(p0+k//2, [x], "mem")
            flow(hchk + sum((self.ha(c) for c in range(3)), []), last-3, p0+3, "ha0", budget=40)
            e = flow(self.epi_gu(ACCB[3], 3, "hB3"), p0+1, p0+7, "epiB3", budget=40)
            s = [At(e)]
        else:
            self.pre1 = self.qmask()
            s = []
        s += [At(done[8]+2)] + merge(buf[0], buf[8]) + mx(buf[0], True)
        flow(s, p0, p0+9, "m0", budget=40)
        for k, i in enumerate((1, 2, 3, 4, 5)):
            flow(mx(buf[i], False), max(done[i]+2, p0+10), min(p0+13+2*k, end), f"m{i}", budget=36)
        t = mx(buf[6], False) + (hchk if q else []) + mx(buf[7], False)
        t += ["v_max_f32 v2, v2, v3", "v_mov_b32 v3, v2", "v_permlane32_swap_b32 v2, v3", "v_max_f32 v2, v2, v3"]
        t += [f"v_sub_f32 v{NEGB+r}, 0, v2" for r in range(16)]
        self.tail1 = L(t)

    def pass2(self, q):
        o = self.stamp("p1")
        NEG, O = vr(NEGB, 16), vr(240, 16)
        sbuf = {0: 144, 8: 160, 1: 176, 2: 160, 3: 144, 4: 176, 5: 160, 6: 144, 7: 176}
        vbuf = {i: 72 + 8*(k % 5) for k, i in enumerate(self.ORDER)}
        Sm = lambda i: [f"{MF} {vr(sbuf[i], 16)}, {ar(self.kreg(i))}, {vr(QF)}, {NEG}",
                        f"{MF} {vr(sbuf[i], 16)}, {ar(self.kreg(i)+4)}, {vr(QF+4)}, {vr(sbuf[i], 16)}"]
        Vr = lambda i: [f"ds_read_b64_tr_b16 {ar(vbuf[i]+4*s_+2*mm, 2)}, v{VRD+mm} offset:{2048*i+256*s_}" for s_ in range(2) for mm in range(2)]
        PV = lambda i, P, z=False: [f"{MF} {O}, {ar(vbuf[i])}, {vr(P)}, {'0' if z else O}", f"{MF} {O}, {ar(vbuf[i]+4)}, {vr(P+4)}, {O}"]
        side = sum((self.ha(c) for c in range(0 if q else 3, 14)), []) + sum((self.w2b(i) for i in range(6, 14)), [])
        def body(b, P, ms, rds, nside):
            s = []
            ms, rds = list(ms), list(rds)
            for k in range(4):
                s += [f"v_exp_f32 v{b+4*k+e}, v{b+4*k+e}" for e in range(4)]
                if k:
                    s += [f"v_cvt_pk_bf16_f32 v{P+2*k-2+e}, v{b+4*k-4+2*e}, v{b+4*k-3+2*e}" for e in range(2)]
                if ms:
                    s += [ms.pop(0)]
                    if rds:
                        s += [rds.pop(0)]
                    for _ in range(nside):
                        if side:
                            s += [side.pop(0)]
            s += rds
            s += [f"v_cvt_pk_bf16_f32 v{P+6+e}, v{b+12+2*e}, v{b+13+2*e}" for e in range(2)]
            return s
        tk = lambda n: [side.pop(0) for _ in range(n)]
        o += Sm(0) + Vr(0) + tk(3) + Sm(8) + Vr(8) + tk(3) + Sm(1) + Vr(1) + tk(3)
        o += self.merge(144, 160)
        o += body(144, 224, Sm(2), Vr(2), 2)
        o += [f"v_and_b32 v{232+k}, v{EM+k}, v{224+k}" for k in range(8)] + [f"v_xor_b32 v{224+k}, v{232+k}, v{224+k}" for k in range(8)]
        PB = {1: EM, 2: 224, 3: EM, 4: 224, 5: EM, 6: 224, 7: EM}
        if not q:
            o += self.publish(2, "hB3")
        o += body(176, PB[1], PV(0, 224, True) + PV(8, 232), [], 2)
        for i in range(2, 8):
            ms = (Sm(i+1) if i < 7 else []) + PV(i-1, PB[i-1])
            o += body(sbuf[i], PB[i], ms, Vr(i+1) if i < 7 else [], 2)
        o += PV(7, PB[7]) + side
        o += [I(self.POLLH, tag="phb")]
        o += self.stamp("p2")
        o += [f"v_cndmask_b32 v2, 0, v240, {MASKA}", f"v_cndmask_b32 v2, v2, v252, {MASKB}", "v_mov_b32 v3, v2",
              "v_permlane32_swap_b32 v2, v3", "v_add_f32 v2, v2, v3", "v_rcp_f32 v2, v2",
              f"v_mul_f32 v2, {f32(LOG2E**-3)}, v2", f"v_cndmask_b32 v3, v2, 0, {MASKA}", f"v_cndmask_b32 v4, v2, 0, {MASKB}"]
        for r in (4, 5, 6, 7, 8, 9, 10, 11, 0, 1, 2, 3, 12, 13, 14, 15):
            o += [f"v_mul_f32 v{240+r}, v{3 if r < 4 else 4 if r >= 12 else 2}, v{240+r}"]
        o += [f"v_cvt_pk_bf16_f32 v{232+k}, v{240+2*k}, v{241+2*k}" for k in range(8)]
        o += [I(f"buffer_store_dwordx4 {vr(232+4*m)}, {vL16}, {WS}, {sOst} offen offset:{1024*m} sc1", tag=f"o{m}") for m in range(2)]
        return L(o)

    def phase4(self, q):
        p = "Q" if q else "G"
        o = [f"s_cmp_eq_u32 {sNH}, 0", f"s_cbranch_scc1 L_fin{p}"]
        self.slow += [f"L_fin{p}:", "s_waitcnt vmcnt(0)",
                      f"buffer_store_dword {vOne}, {vFO}, {WS}, {sFlag} offen offset:192 sc1", "s_endpgm"]
        tl = Timeline()
        HBR, OR_, ACS = 144, 32, 112
        def kstep(a, b, acc, z):
            g = []
            for sg in range(4):
                d = ar(acc+16*sg, 16)
                g.append(tl.add(f"{MF} {d}, {ar(a+4*(sg >> 1))}, {vr(b+4*(sg & 1))}, {'0' if z else d}"))
            return g[0]
        gA = [kstep(W2A+8*c, XB+8*c, 0, c == 0) for c in range(12)]
        bb = lambda k: ABUF + 8*(k % 6)
        gB = [kstep(bb(c), HBR+8*c if c < 14 else XB+8*(c-2), 0, False) for c in range(16)]
        last = len(tl.m) - 1
        for c in range(12):
            tl.pin(gA[c], [WAIT(vm=f"hl{c}")], "pre")
        for c in range(16):
            tl.pin(gB[c], [WAIT(vm=f"hb{c}" if c < 14 else None, lg=f"rb{c}")], "pre")
        if self.prof:
            for nm, g in (("hbchk", gA[1]), ("4a", gB[0]), ("4b7", gB[7])):
                tl.pin(g, self.stamp(nm), "pre")
        tl.pin(gA[4], ["s_barrier"])
        hB = [WAIT(vm="phb"), self.check("hb"+p, self.POLLH, self.CMPHB)]
        for c in range(14):
            hB += self.hload(c, HBR+8*c, f"hb{c}", 8192 if c < 13 else 0)
        e, _ = tl.flow(hB, 0, gA[11])
        e2, _ = tl.flow(self.publish(3, "o1"), gA[6], gA[11])
        sOL, sXO, sNO, sWO, sLT = "s66", "s67", "s68", "s75", "s76"
        vRW, vRR_, vSW, vSR, vOut, vO, vLT = 2, 5, 6, 11, 12, 9, 24
        t = ["s_mov_b32 s12, s28", "s_mov_b32 s13, s29", f"s_mov_b32 s14, {448*896}", "s_mov_b32 s15, 0x20000",
             "s_mov_b32 s16, s30", "s_mov_b32 s17, s31", "s_mov_b32 s18, 1835008", "s_mov_b32 s19, 0x20000",
             f"s_lshr_b32 s69, {sW4k}, 12", f"s_xor_b32 {sLT}, s69, 1", f"s_mul_i32 {sLT}, {sLT}, 12288",
             f"s_sub_u32 s70, {sLT}, {sWB}", f"v_add_u32 v{vLT}, s70, v{ADW}", f"v_add_u32 v{vLT+1}, s70, v{ADW+1}",
             f"s_mul_i32 {sWO}, s69, {112*896}", f"s_lshl_b32 s70, {sCT}, 7", f"s_add_u32 {sWO}, {sWO}, s70",
             f"s_lshl_b32 {sOL}, {sRT}, 16", "s_lshl_b32 s71, s69, 13", f"s_add_u32 {sOL}, {sOL}, s71", f"s_add_u32 {sOL}, {sOL}, {OB}",
             "s_and_b32 s71, s69, 1", f"s_lshl_b32 s72, {sRT}, 1", "s_add_u32 s72, s72, s71", f"s_mul_i32 {sXO}, s72, 28672",
             f"s_add_u32 {sXO}, {sXO}, s70", "s_lshr_b32 s72, s69, 1", "s_lshl_b32 s72, s72, 6", f"s_add_u32 {sXO}, {sXO}, s72",
             "s_lshl_b32 s72, s69, 2", f"s_lshl_b32 {sNO}, 0x000f000f, s72",
             "s_lshl_b32 s71, s71, 15", f"v_add_u32 v{vO}, s71, {vL16}", f"v_xor_b32 v{vO+1}, 0x8000, v{vO}",
             "v_and_b32 v13, 31, v0", "v_mul_u32_u24 v13, 896, v13", "v_lshrrev_b32 v12, 5, v0", f"v_lshl_add_u32 v{vOut}, v12, 4, v13"]
        for sg in range(4):
            t += [f"s_xor_b32 s72, s69, {sg}", "s_mul_i32 s73, s72, 12288", f"s_mul_i32 s74, s72, {WREG}", f"s_add_u32 s74, s74, {BIG+16384}",
                  f"v_add_u32 v{vRW+sg-1 if sg else vRR_}, s73, {vL16}", f"v_add_u32 v{vSW+sg-1 if sg else vSR}, s74, {vL16}"]
        et, _ = tl.flow(t, gA[0], gA[11])
        late = self.slabdma(W2, sLT, 0, "w2b14", -192*896) + self.slabdma(W2, sLT, 2048, "w2b15", W2ROW)
        el, _ = tl.flow(late, max(e, et, gA[4]) + 1, gB[1])
        for c in range(16):
            g0 = gB[c-3] if c >= 3 else gA[9+c]
            rd = self.slab_reads(ADW, 2048*c, bb(c), f"rb{c}") if c < 14 else self.slab_reads(vLT, 2048*(c-14), bb(c), f"rb{c}")
            tl.flow([WAIT(vm=f"w2b{c}")] + rd, g0, g0+3, maxds=2)
        XR = 96
        tl.flow([I(f"buffer_load_dwordx4 {vr(XR+4*k)}, v{vOut}, {X}, {sXO} offen offset:{32*k}") for k in range(2)], max(el+1, gB[0]), gB[2])
        rows = [8*((7*hh) >> 1) + 16*m for hh in range(4) for m in range(2)]
        wo = []
        for k in range(8):
            wo += [At(gB[k]+1)] + self.slabdma(WO, sWB, 2048*k, f"wo{k}", (rows[k]-rows[k-1])*896 if k else 0, so=sWO)
        tl.flow(wo, max(el+1, gB[0]), last)
        pollO = f"buffer_load_dword v29, {vPB}, {WS}, 0 offen offset:128 sc1"
        cmpO = ["v_cmp_eq_u32 vcc, 1, v29", f"s_andn2_b32 vcc_lo, {sNO}, vcc_lo"]
        ol = [At(gB[4]), I(pollO, tag="po"), At(gB[9]), WAIT(vm="po"), self.check("o"+p, pollO, cmpO)]
        for k in range(8):
            ol += [I(f"buffer_load_dwordx4 {vr(OR_+8*k+4*b)}, v{vO+b}, {WS}, {sOL} offen offset:{1024*(k & 3)} sc1", tag=f"ol{k}") for b in range(2)]
            if k == 3:
                ol += [f"s_add_u32 {sOL}, {sOL}, 4096"]
        tl.flow(ol, gB[4], last)
        xr = [f"v_permlane32_swap_b32 v{XR+4*k+e}, v{XR+4*k+e+2}" for k in range(2) for e in range(2)]
        XF = 112
        for k in range(8):
            xr += [f"v_lshlrev_b32 v{XF+2*k}, 16, v{XR+k}", f"v_and_b32 v{XF+2*k+1}, 0xffff0000, v{XR+k}"]
        tl.flow(xr, gB[8], last)
        self.log.append(f"{p} phase4 estimate {tl.estimate()}")
        o += tl.emit()
        o += self.stamp("4b")
        def reduce(acc, vw, vrd, dst, pre=()):
            s = []
            for sg in (1, 2, 3):
                s += [f"ds_write_b128 v{vw+sg-1}, {ar(acc+16*sg+4*k)} offset:{4096*(sg-1)+1024*k}" for k in range(4)]
            s += list(pre)
            s += [f"v_accvgpr_read_b32 v{dst+r}, a{acc+r}" for r in range(16)]
            s += [WAIT(lg=0), "s_barrier"]
            s += [f"ds_read_b128 {vr(dst+16+16*sg+4*k)}, v{vrd} offset:{4096*sg+1024*k}" for k in range(4) for sg in range(3)]
            for k in range(4):
                for e in range(4):
                    r = 4*k + e
                    s += [f"v_add_f32 v{dst+16+r}, v{dst+16+r}, v{dst+32+r}", f"v_add_f32 v{dst+r}, v{dst+r}, v{dst+48+r}"]
                s += [f"v_add_f32 v{dst+4*k+e}, v{dst+4*k+e}, v{dst+16+4*k+e}" for e in range(4)]
            return s
        Bv, Sv = 128, 192
        o += reduce(0, vRW, vRR_, Bv)
        T = Bv + 16
        for k in range(4):
            r = range(4*k, 4*k+4)
            o += [f"v_mul_f32 v{T+e}, {f32(-1/LOG2E)}, v{Bv+e}" for e in r] + [f"v_exp_f32 v{T+e}, v{T+e}" for e in r]
            o += [f"v_add_f32 v{T+e}, 1.0, v{T+e}" for e in r] + [f"v_rcp_f32 v{T+e}, v{T+e}" for e in r]
            o += [f"v_mul_f32 v{Bv+e}, v{Bv+e}, v{T+e}" for e in r]
        o += self.stamp("bred")
        tl = Timeline()
        g5 = [kstep(bb(k), OR_+8*k, ACS, k == 0) for k in range(8)]
        for k in range(8):
            rd = [WAIT(vm=f"wo{k}")] + self.slab_reads(ADW, 2048*k, bb(k), f"ro{k}")
            if k < 3:
                o += rd
            else:
                tl.flow(rd, g5[k-3], g5[k-3]+3, maxds=2)
            tl.pin(g5[k], [WAIT(vm=f"ol{k}", lg=f"ro{k}")], "pre")
        o += tl.emit()
        o += self.stamp("5")
        o += reduce(ACS, vSW, vSR, Sv)
        o += [f"v_fma_f32 v{Sv+r}, v{Sv+r}, v{Bv+r}, v{XF+r}" for r in range(16)]
        for qq in range(2):
            n = Sv + 8*qq
            o += [f"v_cvt_pk_bf16_f32 v{n+k}, v{n+2*k}, v{n+2*k+1}" for k in range(4)]
        for qq in range(2):
            n = Sv + 8*qq
            o += [f"v_permlane32_swap_b32 v{n}, v{n+2}", f"v_permlane32_swap_b32 v{n+1}, v{n+3}"]
        o += [f"buffer_store_dwordx4 {vr(Sv+8*qq)}, v{vOut}, {OUT}, {sXO} offen offset:{32*qq}" for qq in range(2)]
        return L(o)

    def profile_dump(self):
        if not self.prof:
            return []
        mv = lambda a, lane: [f"v_accvgpr_read_b32 v20, a{a}", "s_nop 0", "v_readfirstlane_b32 s2, v20", "s_nop 3", f"v_writelane_b32 v21, s2, {lane}"]
        o = self.stamp("end")
        return o + L(mv(250, 63) + mv(251, 62) + [
            "s_memrealtime s[2:3]", WAIT(lg=0), "v_writelane_b32 v21, s2, 61",
            "s_getreg_b32 s2, hwreg(HW_REG_XCC_ID)", "v_writelane_b32 v21, s2, 60", f"s_mov_b32 s2, {self.nstamp}",
            "v_writelane_b32 v21, s2, 59", f"s_lshl_b32 s2, {sFlag}, 6", f"s_add_u32 s2, s2, {PROF}", "v_lshlrev_b32 v20, 2, v0",
            f"buffer_store_dword v21, v20, {WS}, s2 offen"])

    def path(self, q):
        st, S = self.stages(q), self.steps(q)
        self.nstamp = 0
        self.names = []
        self.finelist = []
        o = self.prologue(q, st, S)
        o += self.stamp("pro") + L(sum(self.finelist, [])) + self.gemm1(q, st, S)
        o += self.pass2(q) + self.stamp("att")
        if self.stop == "att":
            o += self.publish(3, "o1")
        else:
            o += self.phase4(q)
        o += self.profile_dump() + L(["s_endpgm"])
        if self.prof:
            self.log.append(("Q" if q else "G") + " stamps: " + " ".join(self.names))
        return o

    def build(self):
        ent = self.entry()
        text = []
        notes = []
        for q in (False, True):
            log = []
            code, auto, nops = finalize(ent + self.path(q), log)
            notes.append("; stamps " + ("Q" if q else "G") + ": " + " ".join(self.names))
            self.log += [f"path {'Q' if q else 'G'}: {len(code)} instrs, {auto} auto waits, {nops} nop states"] + log
            if q:
                k = next(i for i, x in enumerate(code) if x.text == "L_Q:")
                code = code[k:]
            text += [x.text for x in code]
        text += [x if isinstance(x, str) else x.text for x in self.slow] + ["L_exit:"]
        head = open(REF).read().split("; @launch")[0]
        body = "\n".join(t if t.endswith(":") else "    " + t for t in text)
        return (head + "; @launch grid=(256,1,1) block=(256,1,1) lds=163840\n" + ("\n".join(notes) + "\n" if self.prof else "") +
                f'.amdgcn_target "amdgcn-amd-amdhsa--gfx950"\n.text\n.globl {KNAME}\n.p2align 8\n.type {KNAME},@function\n{KNAME}:\n'
                f"{body}\n    s_endpgm\n"
                f'.section .rodata,"a"\n.p2align 6\n.amdhsa_kernel {KNAME}\n  .amdhsa_next_free_vgpr 512\n  .amdhsa_next_free_sgpr 102\n'
                "  .amdhsa_accum_offset 256\n  .amdhsa_group_segment_fixed_size 0\n  .amdhsa_kernarg_size 80\n"
                "  .amdhsa_user_sgpr_count 2\n  .amdhsa_user_sgpr_kernarg_segment_ptr 1\n  .amdhsa_system_sgpr_workgroup_id_x 1\n"
                ".end_amdhsa_kernel\n")


if __name__ == "__main__":
    import argparse
    ap = argparse.ArgumentParser()
    ap.add_argument("out")
    ap.add_argument("--map", default="8x4")
    ap.add_argument("--stop")
    ap.add_argument("--prof", action="store_true")
    ap.add_argument("-v", action="store_true")
    ap.add_argument("--exp", default="")
    a = ap.parse_args()
    g = Gen(a.map, a.stop, a.prof, tuple(a.exp.split(',')))
    open(a.out, "w").write(g.build())
    for l in g.log:
        if a.v or not l.startswith(("nop", "auto")):
            print(l)
```

```python
import math, struct, sys
sys.path.insert(0, "gen")
from fw import *

KNAME = "recurrent_scan__sliding_block__glu_gated_swiglu__prompt_kernel"
REF = "recurrent_scan__sliding_block__glu_gated_swiglu__prompt.s.ref"

def f32(x):
    return "0x%08x" % struct.unpack("<I", struct.pack("<f", x))[0]

LOG2E = math.log2(math.e)
QKV, HB, OB, PROF, OOB = 0x10000, 0x600000, 0xE00000, 0x1800000, 0x10000000
QP, HP, OP = 86016, 114688, 32768
BIG, WREG = 49152, 28672
VBASE = 24576
SPIN = 1 << 16
W2ROW = 128*896

X, WQ, W1, W3, W2, WS = "s[4:7]", "s[8:11]", "s[12:15]", "s[16:19]", "s[20:23]", "s[24:27]"
WO, OUT = "s[12:15]", "s[16:19]"
DBG = "s[32:33]"
MASK0, TABA, TABB = 34, 66, 73
sWB, sH, sKV, sFlag, sW2, sKT, sVT = "s80", "s81", "s82", "s83", "s84", 85, 88
NEEDKV, MASKA, MASKB = "s[90:91]", "s[92:93]", "s[94:95]"
sNQ, sHL, sOst, sW4k, sRT, sCT, sNH = "s96", "s97", "s98", "s99", "s100", "s101", "s0"
tRB, tC, tROT, tW, tI, tJ, tTOK, tP0, tA, tB = ["s%d" % k for k in range(52, 62)]

vL16 = "v1"
ADG, ADG2, ADK, VOG, VOK, ADW, VOW, ADX = 2, 24, 6, 8, 12, 14, 16, 18
QRING, QP0, QP1 = (6, 7, 2), (3, 4, 5), (8, 9, 10)
vRR, vNM = "v18", "v19"
vPA, vPB = "v22", "v23"
SUM, SQ, XOF, CLR = 24, 28, 24, 248
vFO, vOne = "v30", "v31"
XB = 32
ACCA, ACCB, TMP = (144, 160, 176, 192), (144, 160, 176, 208), 224
ABUF, W2A, K8, ST = 64, 112, 208, 224
KVO = 8
ONE0, KRD, VRD, HOF = 8, 12, 6, 18
QF, EM, NEGB = 192, 200, 208
PSLOT = (2048, 16384, 18432, 32768, 34816, 0)
ONES = "a[248:249]"
MF = "v_mfma_f32_32x32x16_bf16"
M4 = "v_mfma_f32_4x4x4_16b_bf16"

def vr(b, n=4): return f"v[{b}:{b+n-1}]"
def ar(b, n=4): return f"a[{b}:{b+n-1}]"

def weave(main, extra, every, start=0):
    out, extra = [], list(extra)
    for k, x in enumerate(main):
        out.append(x)
        if extra and k >= start and (k - start) % every == 0:
            out.append(extra.pop(0))
    return out + extra


class Gen:
    def __init__(self, mapping="8x4", stop=None, prof=False, exp=()):
        self.mapping, self.stop, self.prof, self.exp = mapping, stop, prof, exp
        self.slow = []
        self.lz = next((tuple(int(v) for v in e.split(":")[1:]) for e in exp if e.startswith("lz:")), None)
        self.lazy_open = False
        self.oflag = next((" " + e[2:].replace("+", " ") for e in exp if e.startswith("o=")), "")
        self.nstamp = 0
        self.log = []
        self.names = []

    def lazy(self, name):
        o = [f"v_writelane_b32 v21, s2, {self.nstamp-1}"] if self.lazy_open else []
        self.lazy_open = name is not None
        if name is not None:
            self.nstamp += 1
            self.names.append(name)
            o += [I("s_memtime s[2:3]", opt=True)]
        return o

    def stamp(self, name=""):
        if not self.prof or (self.lz and name != "end"):
            return []
        k = self.nstamp
        self.nstamp += 1
        self.names.append(name)
        return [Group(["s_memtime s[2:3]", WAIT(lg=0), f"v_writelane_b32 v21, s2, {k}"])]

    def fine(self, name, early=False):
        if "fine" not in self.exp:
            return []
        k = self.nstamp
        self.nstamp += 1
        self.names.append(name)
        self.finelist.append([f"v_accvgpr_read_b32 v20, a{160+k}", "s_nop 0", "v_readfirstlane_b32 s2, v20", "s_nop 3", f"v_writelane_b32 v21, s2, {k}"])
        return L(["s_memtime vcc", WAIT(lg=0), f"v_accvgpr_write_b32 a{160+k}, vcc_lo"])

    def check(self, name, load, cmpseq):
        self.slow += [f"L_slow_{name}:", f"s_mov_b32 s3, {SPIN}", f"L_spin_{name}:", load, "s_waitcnt vmcnt(0)"] + cmpseq + [
            f"s_cbranch_scc0 L_back_{name}", "s_sub_u32 s3, s3, 1", "s_cmp_lg_u32 s3, 0",
            f"s_cbranch_scc1 L_spin_{name}", f"s_branch L_back_{name}"]
        return Group(cmpseq + [f"s_cbranch_scc1 L_slow_{name}", f"L_back_{name}:"])

    def publish(self, event, tags):
        return [Group([WAIT(vm=tags), I(f"buffer_store_dword {vOne}, {vFO}, {WS}, {sFlag} offen offset:{64*event} sc1")])]

    def entry(self):
        o = ["s_cmp_ge_u32 s2, 256", "s_cbranch_scc1 L_exit",
             "s_load_dwordx2 s[4:5], s[0:1], 0", "s_load_dwordx16 s[36:51], s[0:1], 8",
             "s_load_dwordx2 s[24:25], s[0:1], 72"] + (["s_memtime s[64:65]", "s_memrealtime s[34:35]"] if self.prof else []) + [
             "v_lshrrev_b32 v2, 6, v0", "v_and_b32 v0, 63, v0",
             f"s_and_b32 {tJ}, s2, 7", f"v_readfirstlane_b32 {tW}, v2", f"s_lshr_b32 {tI}, s2, 3"]
        if self.mapping == "8x4":
            o += [f"s_and_b32 {tA}, {tJ}, 1", f"s_lshl_b32 {tA}, {tA}, 3", f"s_and_b32 {tROT}, {tI}, 7",
                  f"s_add_u32 {tRB}, {tA}, {tROT}",
                  f"s_lshr_b32 {tA}, {tJ}, 1", f"s_lshl_b32 {tA}, {tA}, 2", f"s_lshr_b32 {tB}, {tI}, 3",
                  f"s_add_u32 {tC}, {tA}, {tB}", f"s_lshl_b32 {tB}, {tB}, 1", f"s_add_u32 {tROT}, {tROT}, {tB}"]
        elif self.mapping == "4x8":
            o += [f"s_and_b32 {tA}, {tJ}, 3", f"s_lshl_b32 {tA}, {tA}, 2", f"s_and_b32 {tROT}, {tI}, 3",
                  f"s_add_u32 {tRB}, {tA}, {tROT}",
                  f"s_lshr_b32 {tA}, {tJ}, 2", f"s_lshl_b32 {tA}, {tA}, 3", f"s_lshr_b32 {tB}, {tI}, 2",
                  f"s_add_u32 {tC}, {tA}, {tB}", f"s_lshl_b32 {tROT}, {tROT}, 1", f"s_add_u32 {tROT}, {tROT}, {tB}"]
        else:
            raise ValueError(self.mapping)
        o += [f"s_sub_u32 {tA}, {tROT}, 7", f"s_cmp_ge_u32 {tROT}, 7", f"s_cselect_b32 {tROT}, {tA}, {tROT}"]
        if "norot" in self.exp:
            o += [f"s_mov_b32 {tROT}, 0"]
        o += [f"s_lshl_b32 {tTOK}, {tRB}, 2", f"s_add_u32 {tTOK}, {tTOK}, {tW}",
              f"s_mul_i32 {sWB}, {tW}, {WREG}", f"s_add_u32 {sWB}, {sWB}, {BIG}",
              f"s_lshl_b32 {sW4k}, {tW}, 12",
              "s_mov_b32 s6, 1835008", "s_mov_b32 s7, 0x20000", f"s_mov_b32 s26, {OOB}", "s_mov_b32 s27, 0x20000"]
        o += ["v_lshrrev_b32 v2, 3, v0", "v_and_b32 v3, 7, v0", "v_lshrrev_b32 v4, 4, v0", "v_xor_b32 v4, v3, v4",
              "v_mul_u32_u24 v5, 896, v2", "v_lshl_add_u32 v24, v4, 4, v5", "v_xor_b32 v25, 64, v24",
              "v_add_u32 v25, 6144, v25", "v_add_u32 v26, 12288, v24", "v_add_u32 v27, 12288, v25",
              f"v_lshlrev_b32 {vL16}, 4, v0",
              f"s_mul_i32 s3, {tTOK}, 28672", f"s_lshl_b32 s28, {tROT}, 7", "s_add_u32 s28, s28, s3",
              "s_add_u32 s29, s3, 896", "s_mov_b32 s30, s3",
              f"s_cmp_ge_u32 {tC}, 14", "s_cbranch_scc1 L_Q"]
        return L(o)

    def xdma(self, n):
        o = [f"s_add_u32 m0, {sWB}, {4096*n}"]
        if n:
            o += ["s_add_u32 s28, s28, 128", "s_cmp_eq_u32 s28, s29", "s_cselect_b32 s28, s30, s28"]
        else:
            o += ["s_nop 0"]
        o = [Group(o)]
        for i in range(4):
            o.append(I(f"buffer_load_dwordx4 v{XOF+i}, {X}, s28 offen offset:{1024*i} lds", tag=f"x{n}" if i == 3 else None))
        return o

    def stages(self, q):
        st = {}
        def dma(name, loc, items, post):
            m0 = f"s_add_u32 m0, {sW4k}, {16384*loc[1]}" if loc[0] == "ring" else f"s_add_u32 m0, {sWB}, {4096*loc[1]}"
            o = [I(m0)]
            for k, (srd, vo, so, off) in enumerate(items):
                o.append(I(f"buffer_load_dwordx4 v{vo}, {srd}, {so} offen offset:{off} lds", tag=name if k == len(items) - 1 else None))
            st[name] = o + L(post)
        if not q:
            for s in range(4):
                it = [(WQ, VOK, f"s{TABB+2*s}", 0), (WQ, VOK+1, f"s{TABB+2*s}", 1024)]
                if s < 3:
                    it += [(WQ, VOK, f"s{TABB+2*s+1}", 2048), (WQ, VOK+1, f"s{TABB+2*s+1}", 3072)]
                dma(f"K{s}", ("ring", s % 3), it, [])
            for blk in "AB":
                for n in range(7):
                    t = f"s{TABA+n}"
                    dma(f"{blk}{n}", ("part", n), [(W1, VOG, t, 0), (W1, VOG+1, t, 1024), (W3, VOG+2, t, 2048), (W3, VOG+3, t, 3072)],
                        [f"s_add_u32 {t}, {t}, 128"] if blk == "A" else [])
        else:
            for blk in "AB":
                for n in range(7):
                    a, b = f"s{TABA+n}", f"s{TABB+n}"
                    post = [f"s_add_u32 {a}, {a}, s12", f"s_add_u32 {b}, {b}, s13"] if blk == "A" else []
                    dma(f"{blk}{n}", self.qloc(blk, n), [(WQ, VOK, a, 0), (WQ, VOK+1, a, 1024), (WQ, VOK, b, 2048), (WQ, VOK+1, b, 3072)], post)
        return st

    @staticmethod
    def qloc(blk, n):
        if blk == "A":
            return ("ring", n) if n < 3 else ("part", n - 3)
        return ("part", 4 + n) if n < 3 else (("ring", n - 3) if n < 6 else ("part", 0))

    def steps(self, q):
        S = []
        if not q:
            for n in range(7):
                for kp in range(2):
                    S.append([(ar(16*tt, 16), n+kp+b == 0, 4*n+2*kp+b, ADK+tt, 16384*((n >> 1) % 3) + (2*kp+b)*4096 + (n & 1)*2048)
                              for b in range(2) for tt in range(2)])
            for acc in (ACCA, ACCB):
                fr = lambda t, n, ks: (vr(acc[t], 16), n+ks == 0, 4*n+ks, (ADG if ks < 2 else ADG2)+t, (ks & 1)*WREG + 4096*n)
                for n in range(3):
                    for ks in range(4):
                        S.append([fr(t, n, ks) for t in range(4)])
                for t in range(4):
                    for n in range(3, 7):
                        S.append([fr(t, n, ks) for ks in range(4)])
        else:
            def fr(blk, t, n, ks):
                kind, p = self.qloc(blk, n)
                r = (t & 1) if blk == "A" else t
                if kind == "ring":
                    ad, off = QRING[r], 16384*p + 4096*ks
                else:
                    ad, off = (QP0 if ks < 2 else QP1)[r], (ks & 1)*WREG + 4096*p
                acc = ar(16*t, 16) if blk == "A" else vr(ACCB[t], 16)
                return (acc, n+ks == 0, 4*n+ks, ad, off + (t >> 1)*2048)
            for n in range(7):
                for ks in range(4):
                    S.append([fr("A", t, n, ks) for t in range(4)])
            for n in range(3):
                for ks in range(4):
                    S.append([fr("B", t, n, ks) for t in range(3)])
            for t in range(3):
                for n in range(3, 7):
                    S.append([fr("B", t, n, ks) for ks in range(4)])
        return S

    def step_reads(self, S, G):
        o = []
        for f, (_, _, _, ad, off) in enumerate(S[G]):
            for mm in range(2):
                b = ABUF + 16*(G % 3) + 4*f + 2*mm
                o.append(I(f"ds_read_b64_tr_b16 {ar(b, 2)}, v{ad} offset:{off+512*mm}"))
        o[-1].tag = f"R{G}"
        return o

    def center(self, j):
        s = XB + 8*j
        o = [f"v_fma_f32 v{s+e}, v{s+e}, {vRR}, {vNM}" for e in range(8)]
        o += [f"v_cvt_pk_bf16_f32 v{XB+4*j+k}, v{s+2*k}, v{s+2*k+1}" for k in range(4)]
        return o

    def unpack(self, j):
        s = XB + 8*j
        o = []
        for k in range(4):
            o += [f"v_lshlrev_b32 v{s+2*k}, 16, v{s+4+k}", f"v_and_b32 v{s+2*k+1}, 0xffff0000, v{s+4+k}"]
        o[6], o[7] = f"v_lshlrev_b32 v{s+6}, 16, v{s+7}", f"v_and_b32 v{s+7}, 0xffff0000, v{s+7}"
        return o

    def prologue(self, q, st, S):
        o = ["L_Q:"] if q else []
        o += [f"v_lshl_add_u32 v5, {tW}, 4, v2", "v_bfe_u32 v4, v0, 4, 1", "v_lshlrev_b32 v7, 4, v3"]
        o += ["v_lshlrev_b32 v6, 6, v4", "v_xor_b32 v6, v6, v7",
              f"v_mul_u32_u24 v{VOK}, 2688, v5", f"v_add_u32 v{VOK}, v{VOK}, v6", f"v_add_u32 v{VOK+1}, {8*2688-1024}, v{VOK}",
              f"v_mul_u32_u24 v{VOW}, 896, v2", f"v_add_u32 v{VOW}, v{VOW}, v6", f"v_add_u32 v{VOW+1}, 6144, v{VOW}"]
        if not q:
            o += ["v_lshlrev_b32 v6, 5, v4", "v_xor_b32 v6, v6, v7",
                  f"v_mul_u32_u24 v{VOG}, 3584, v5", f"v_add_u32 v{VOG}, v{VOG}, v6",
                  f"v_add_u32 v{VOG+1}, {8*3584-1024}, v{VOG}", f"v_xor_b32 v{VOG+2}, 64, v{VOG}", f"v_xor_b32 v{VOG+3}, 64, v{VOG+1}"]
        o += [f"v_mov_b32 v{CLR+k}, 0" for k in range(4)]
        early, late = self.setup(q)
        o += early
        o += [WAIT(lg=0)] + self.fine("karg", True)
        if not q:
            o += ["s_cmp_lg_u32 s2, 0", "s_cbranch_scc1 L_noclear"]
            o += [I(f"buffer_store_dwordx4 {vr(CLR)}, {vL16}, {WS}, {sW4k} offen offset:{1024*k} sc1", opt=True) for k in range(4)]
            o += ["L_noclear:"]
        NX = 4
        for n in range(NX):
            o += self.xdma(n)
        o += self.fine("xiss", True)
        srds = ["s_sub_u32 s8, s36, 2048", "s_subb_u32 s9, s37, 0", f"s_mov_b32 s10, {448*2688+2048}", "s_mov_b32 s11, 0x20000"]
        if not q:
            srds += ["s_mov_b32 s12, s42", "s_mov_b32 s13, s43", f"s_mov_b32 s14, {448*3584}", "s_mov_b32 s15, 0x20000",
                     "s_sub_u32 s16, s44, 2048", "s_subb_u32 s17, s45, 0", f"s_mov_b32 s18, {448*3584+2048}", "s_mov_b32 s19, 0x20000"]
        o += srds + late + self.fine("setup")
        m0fix = lambda s: [Group([s[0], I("s_nop 0")])] + s[1:]
        w = ("K0", "K1", "K2") if not q else ("A0", "A1", "A2")
        queue = [self.xdma(n) for n in range(NX, 7)] + [m0fix(st[k]) for k in w]
        for n in range(7):
            o += [WAIT(vm=f"x{n}")] + self.fine(f"x{n}")
            for ks in range(4):
                j = 4*n + ks
                o += [I(f"ds_read_b128 {vr(XB+8*j+4)}, v{ADX+ks} offset:{4096*n}", tag=f"xr{j}")]
            if n == 0 and not q:
                o += ["s_cmp_lg_u32 s2, 0", "s_cbranch_scc1 L_nodbg", f"s_lshr_b32 s3, {sW4k}, 10", "v_mov_b32 v254, s3", "v_mov_b32 v255, 1",
                      I(f"global_store_dword v254, v255, {DBG} sc1", opt=True), "L_nodbg:"]
            body = []
            for ks in range(4):
                j = 4*n + ks
                r = XB + 8*j + 4
                u = self.unpack(j - 1) if (ks and n < 6) else []
                cs = "0" if j == 0 else ar(0)
                cq = "0" if j == 0 else vr(SQ)
                body += [WAIT(lg=f"xr{j}"),
                         f"{M4} {ar(0)}, {ONES}, {vr(r, 2)}, {cs}", f"{M4} {vr(SQ)}, {vr(r, 2)}, {vr(r, 2)}, {cq}"] + u[:4]
                body += [f"{M4} {ar(0)}, {ONES}, {vr(r+2, 2)}, {ar(0)}", f"{M4} {vr(SQ)}, {vr(r+2, 2)}, {vr(r+2, 2)}, {vr(SQ)}"] + u[4:]
            if n < 6:
                body += self.unpack(4*n + 3)
            dm = queue.pop(0) if (queue and n < 6) else []
            o += dm[:2] + weave(body, dm[2:], 12, 6)
        assert not queue
        o += [WAIT(vm=w[0]), "s_barrier"] + self.step_reads(S, 0) + self.step_reads(S, 1)
        o += self.fine("bar")
        o += ["s_mov_b32 vcc_lo, 0xaaaaaaaa", "s_mov_b32 vcc_hi, 0xaaaaaaaa", "s_mov_b32 s2, 0xcccccccc", "s_mov_b32 s3, 0xcccccccc"]
        fill = sum((self.unpack(j) for j in range(24, 28)), [])
        take = lambda k: [fill.pop(0) for _ in range(min(k, len(fill)))]
        SM = SUM
        o += [f"v_cndmask_b32 v{SQ}, v{SQ}, v{SQ+1}, vcc", f"v_cndmask_b32 v{SQ+2}, v{SQ+2}, v{SQ+3}, vcc",
              f"v_accvgpr_read_b32 v{SM}, a0", f"v_accvgpr_read_b32 v{SM+1}, a0", f"v_cndmask_b32 v{SQ}, v{SQ}, v{SQ+2}, s[2:3]"] + take(1)
        o += [f"v_mov_b32 v{SQ+1}, v{SQ}", f"v_permlane32_swap_b32 v{SM}, v{SM+1}"] + take(1)
        o += [f"v_permlane32_swap_b32 v{SQ}, v{SQ+1}", f"v_add_f32 v{SM}, v{SM}, v{SM+1}", f"v_add_f32 v{SQ}, v{SQ}, v{SQ+1}",
              f"v_mul_f32 v{SM}, {f32(-1/448)}, v{SM}", f"v_mul_f32 v{SQ}, {f32(1/448)}, v{SQ}",
              f"v_fma_f32 v{SQ}, -v{SM}, v{SM}, v{SQ}", f"v_max_f32 v{SQ}, 0, v{SQ}",
              f"v_add_f32 v{SQ}, {f32(1e-5)}, v{SQ}", f"v_rsq_f32 v{SQ}, v{SQ}"] + take(1)
        o += [f"v_mul_f32 {vRR}, {f32(LOG2E)}, v{SQ}", f"v_mul_f32 {vNM}, v{SM}, {vRR}"]
        o += self.center(0) + self.center(1)
        self.fill = fill
        return L(o)

    def setup(self, q):
        e = []
        e += [f"s_mov_b32 s1, {tROT}"]
        if not q:
            e += [f"s_lshl_b32 {tP0}, {tC}, 8", f"s_lshl_b32 s62, {tC}, 7", "s_add_u32 s62, s62, 896"]
        else:
            e += [f"s_cmp_eq_u32 {tC}, 14", f"s_cselect_b32 {tP0}, 0, 640", f"s_add_u32 s62, {tP0}, 128", f"s_add_u32 {tP0}, {tP0}, 2048",
                  f"s_cmp_eq_u32 {tC}, 14", "s_cselect_b32 s12, 384, 0", "s_cselect_b32 s13, 640, 0", "s_sub_u32 s12, s12, 128", "s_sub_u32 s13, s13, 384"]
        for n in range(7):
            if not q:
                e += [f"s_mul_i32 s{TABA+n}, s1, {64*3584}", f"s_add_u32 s{TABA+n}, s{TABA+n}, {tP0}",
                      f"s_mul_i32 s{TABB+n}, s1, {64*2688}", f"s_add_u32 s{TABB+n}, s{TABB+n}, s62"]
                if n % 2 == 0:
                    e += [f"s_add_u32 s{TABB+n}, s{TABB+n}, 2048"]
            else:
                e += [f"s_mul_i32 s{TABB+n}, s1, {64*2688}", f"s_add_u32 s{TABA+n}, s{TABB+n}, {tP0}",
                      f"s_add_u32 s{TABB+n}, s{TABB+n}, s62"]
            if n < 6:
                e += ["s_add_u32 s1, s1, 1", "s_cmp_eq_u32 s1, 7", "s_cselect_b32 s1, 0, s1"]
        e += ["v_lshrrev_b32 v240, 5, v0", "v_bfe_u32 v241, v0, 4, 1", "v_bfe_u32 v242, v0, 2, 2", "v_and_b32 v243, 3, v0",
              "v_and_b32 v244, 31, v0", "v_bfe_u32 v245, v0, 3, 1",
              "v_lshlrev_b32 v246, 7, v242", "v_lshl_add_u32 v246, v243, 3, v246",
              "v_lshl_add_u32 v247, v245, 1, v241", "v_lshl_add_u32 v247, v247, 5, v246",
              f"v_lshl_add_u32 v{ADK}, v240, 10, v247", f"v_xor_b32 v{ADK+1}, 64, v{ADK}",
              f"v_lshl_add_u32 v{ADW}, v240, 9, v247", f"v_add_u32 v{ADW}, {sWB}, v{ADW}",
              f"s_lshr_b32 {tA}, {tW}, 1", f"s_lshl_b32 {tA}, {tA}, 6", f"v_xor_b32 v{ADW}, {tA}, v{ADW}", f"v_xor_b32 v{ADW+1}, 64, v{ADW}"]
        if not q:
            e += ["v_lshl_add_u32 v247, v241, 1, v245", "v_lshl_add_u32 v247, v247, 5, v246", "v_lshl_add_u32 v247, v240, 10, v247",
                  "v_lshl_add_u32 v247, v241, 11, v247", f"v_add_u32 v{ADG}, {BIG}, v247"] + [f"v_xor_b32 v{ADG+t}, {32*t}, v{ADG}" for t in (1, 2, 3)]
        else:
            e += [f"s_and_b32 {tA}, {tC}, 1", f"s_lshl_b32 {tA}, {tA}, 6", f"v_xor_b32 v{QRING[2]}, {tA}, v{ADK}"]
            e += [f"v_add_u32 v{QP0[r]}, {BIG}, v{QRING[r]}" for r in range(3)]
            e += [f"v_add_u32 v{QP1[r]}, {BIG+2*WREG}, v{QRING[r]}" for r in range(3)]
        e += ["v_bfe_u32 v247, v0, 1, 3", "v_xor_b32 v247, v247, v240", "v_lshlrev_b32 v247, 4, v247",
              f"v_lshl_add_u32 v{ADX}, v244, 7, v247", f"v_add_u32 v{ADX}, {sWB}, v{ADX}"]
        e += [f"v_xor_b32 v{ADX+k}, {32*k}, v{ADX}" for k in (1, 2, 3)]
        e += ["v_mov_b32 v247, 0x3f803f80", "v_accvgpr_write_b32 a248, v247", "v_accvgpr_write_b32 a249, v247"]
        o = []
        o += ["s_mov_b32 s20, s46", "s_mov_b32 s21, s47", f"s_cmp_lt_u32 {tI}, 28", f"s_cselect_b32 s22, {0 if 'now2' in self.exp else 1792*896}, 0",
              f"s_cselect_b32 {sNH}, 0x3fff3fff, 0", "s_mov_b32 s23, 0x20000",
              "s_mov_b32 s32, s50", "s_mov_b32 s33, s51"]
        o += [f"s_and_b32 {tA}, {tI}, 3", f"s_lshl_b32 {sRT}, {tJ}, 2", f"s_add_u32 {sRT}, {sRT}, {tA}", f"s_lshr_b32 {sCT}, {tI}, 2",
              f"s_mul_i32 {tP0}, {tC}, 7", f"s_lshr_b32 {tP0}, {tP0}, 1",
              f"s_mul_i32 {sH}, {tTOK}, {HP}", f"s_lshl_b32 {tA}, {tC}, 13", f"s_add_u32 {sH}, {sH}, {tA}", f"s_add_u32 {sH}, {sH}, {HB}",
              f"s_mul_i32 {tB}, {tTOK}, {QP}", f"s_add_u32 {tB}, {tB}, {QKV}"]
        if not q:
            o += [f"s_lshl_b32 {tA}, {tC}, 12", f"s_add_u32 {sKV}, {tB}, {tA}", f"s_add_u32 {sKV}, {sKV}, {56*512}"]
        else:
            o += [f"s_cmp_eq_u32 {tC}, 14", f"s_cselect_b32 {tA}, 0, {40*512}", f"s_add_u32 {sKV}, {tB}, {tA}",
                  f"s_cmp_eq_u32 {tC}, 14", f"s_cselect_b32 {tA}, 16, 32", f"s_lshl_b32 {tA}, {tA}, 9", f"s_add_u32 s14, {tB}, {tA}",
                  f"s_cmp_eq_u32 {tC}, 14", f"s_cselect_b32 {tA}, 24, 28", f"s_lshl_b32 {tA}, {tA}, 9", f"s_add_u32 s15, {tB}, {tA}"]
        if "nost" in self.exp:
            o += [f"s_mov_b32 {sH}, {OOB}", f"s_mov_b32 {sKV}, {OOB}"]
        o += [f"s_lshl_b32 {sFlag}, {tTOK}, 8", f"s_lshl_b32 {tA}, {tC}, 2", f"s_add_u32 {sFlag}, {sFlag}, {tA}",
              f"s_mul_i32 {sW2}, {tW}, {16*896}", f"s_lshl_b32 {tA}, {sCT}, 7", f"s_add_u32 {sW2}, {sW2}, {tA}",
              f"s_lshl_b32 {tA}, {tP0}, 9", f"s_add_u32 {tA}, {tA}, {56*512}",
              f"s_add_u32 s{sKT+2}, {tB}, {tA}", f"s_add_u32 {tA}, {tA}, {QKV}"]
        for pp in (0, 1):
            o += [f"s_sub_u32 s{sKT+pp}, s{sKT+2}, {(2-pp)*4*QP}", f"s_add_u32 s{sVT+pp}, s{sKT+pp}, {56*512}",
                  f"s_cmp_ge_u32 {tRB}, {2-pp}", f"s_cselect_b32 s{sKT+pp}, s{sKT+pp}, {tA}", f"s_cselect_b32 s{sVT+pp}, s{sVT+pp}, {OOB}"]
        o += [f"s_lshr_b32 {tA}, {tP0}, 3", f"s_lshl_b32 s91, 0x81, {tA}", f"s_add_u32 {tA}, {tP0}, 3", f"s_lshr_b32 {tA}, {tA}, 3",
              f"s_lshl_b32 {tA}, 0x81, {tA}", f"s_or_b32 s91, s91, {tA}", "s_mul_i32 s90, s91, 0x10001",
              f"s_cmp_ge_u32 {tC}, 8", f"s_cselect_b32 {sNQ}, 2, 1",
              f"s_lshl_b32 {sNQ}, {sNQ}, 14",
              f"s_bitcmp1_b32 {tC}, 0", "s_cselect_b32 s92, -1, 0", "s_mov_b32 s93, 0", "s_mov_b32 s94, 0", "s_cselect_b32 s95, 0, -1",
              f"s_mul_i32 {sHL}, {sRT}, {2*HP}", f"s_lshl_b32 {tA}, {tW}, 10", f"s_add_u32 {sHL}, {sHL}, {tA}", f"s_add_u32 {sHL}, {sHL}, {HB}",
              f"s_lshl_b32 {sOst}, {tTOK}, 15", f"s_lshl_b32 {tA}, {tC}, 11", f"s_add_u32 {sOst}, {sOst}, {tA}", f"s_add_u32 {sOst}, {sOst}, {OB}"]
        o += ["v_lshrrev_b32 v246, 4, v0", "v_min_u32 v246, 2, v246", f"s_sub_u32 {tA}, {tTOK}, 8",
              f"v_lshl_add_u32 v246, v246, 2, {tA}", "v_max_i32 v246, 0, v246", "v_and_b32 v247, 15, v0", "v_lshlrev_b32 v247, 2, v247",
              f"v_lshl_add_u32 {vPA}, v246, 8, v247",
              f"s_lshl_b32 {tA}, {sRT}, 9", f"s_add_u32 {tA}, {tA}, 64", "v_lshl_add_u32 v247, v241, 8, v247", "v_lshl_add_u32 v247, v240, 6, v247",
              f"v_add_u32 {vPB}, {tA}, v247"]
        W = lambda k, v: f"v_accvgpr_write_b32 a{ST+k}, v{v}"
        o += ["v_lshlrev_b32 v238, 9, v240", "v_lshlrev_b32 v246, 2, v240", "v_xor_b32 v246, v246, v244",
              "v_lshl_add_u32 v236, v246, 4, v238", "v_xor_b32 v237, 128, v236", W(0, 236), W(1, 237)]
        for pp in (0, 1):
            o += [f"s_cmp_ge_u32 {tRB}, {2-pp}", "s_cselect_b64 vcc, -1, 0",
                  "v_cndmask_b32 v246, v238, v236, vcc", "v_cndmask_b32 v247, v238, v237, vcc", W(2+2*pp, 246), W(3+2*pp, 247)]
        o += [f"s_lshl_b32 {tA}, {tW}, 11", f"v_add_u32 v246, {tA}, v236", f"v_add_u32 v247, {tA}, v237", W(6, 246), W(7, 247),
              f"s_add_u32 {tA}, {tA}, {VBASE}",
              "v_lshrrev_b32 v246, 1, v243", "v_lshl_add_u32 v246, v241, 1, v246",
              "v_lshl_add_u32 v247, v240, 2, v242", "v_lshlrev_b32 v239, 2, v246", "v_xor_b32 v247, v247, v239",
              "v_lshlrev_b32 v247, 4, v247", "v_lshl_add_u32 v247, v246, 9, v247", "v_and_b32 v246, 1, v0", "v_lshl_add_u32 v247, v246, 3, v247",
              f"v_add_u32 v247, {tA}, v247", W(8, 247), "v_xor_b32 v247, 128, v247", W(9, 247),
              f"s_bitcmp1_b32 {tC}, 0", f"s_cselect_b32 {tB}, 0, {3*512+8}", f"s_add_u32 {tA}, {tA}, {tB}",
              f"v_lshl_add_u32 v246, v244, 4, {tA}", "v_lshl_add_u32 v247, v240, 13, v246", W(10, 247),
              "v_add_u32 v246, 16384, v246", W(11, 246),
              f"v_add_u32 v246, {tRB}, v240", "v_cmp_le_u32 vcc, 2, v246", "v_mov_b32 v247, 0x3f803f80", "s_nop 0",
              "v_cndmask_b32 v247, 0, v247, vcc", W(12, 247),
              f"s_and_b32 {tA}, {tW}, 1", f"s_mul_i32 {tB}, {tA}, {HP}", f"v_add_u32 v246, {tB}, {vL16}", W(13, 246),
              f"s_sub_u32 {tB}, {HP}, {tB}", f"v_add_u32 v246, {tB}, {vL16}", W(14, 246),
              "v_cmp_eq_u32 vcc, 0, v0", f"v_mov_b32 v247, {OOB}", "s_nop 0", "v_cndmask_b32 v247, v247, v0, vcc", W(15, 247),
              "v_lshlrev_b32 v246, 2, v240", "v_sub_u32 v246, v244, v246", "v_mov_b32 v238, 0xffff", "v_mov_b32 v239, 0xffff0000"]
        for d in range(8):
            k0 = 8*(d >> 1) + 2*(d & 1)
            o += [f"v_cmp_le_i32 vcc, {k0}, v246", f"v_cmp_le_i32 s[62:63], {k0+1}, v246", "s_nop 0",
                  "v_cndmask_b32 v236, 0, v238, vcc", "v_cndmask_b32 v237, 0, v239, s[62:63]", "v_or_b32 v236, v236, v237", W(16+d, 236)]
        if self.prof:
            o += ["v_mov_b32 v236, s64", "v_accvgpr_write_b32 a250, v236", "v_mov_b32 v236, s34", "v_accvgpr_write_b32 a251, v236"]
        self.ptrmove = ["s_mov_b32 s28, s38", "s_mov_b32 s29, s39", "s_mov_b32 s30, s48", "s_mov_b32 s31, s49"]
        return e, o

    def masks(self):
        o = []
        for r in range(16):
            k0 = 8*(r >> 2) + (r & 3)
            o += [f"s_mov_b32 s{MASK0+2*r}, 0x{(0xffffffff << k0) & 0xffffffff:x}",
                  f"s_mov_b32 s{MASK0+2*r+1}, 0x{(0xffffffff << (k0+4)) & 0xffffffff:x}"]
        return o

    def epi_gu(self, b, t, tag):
        o = []
        for half in range(2):
            g, u = b+4*half, b+8+4*half
            o += [f"v_mul_f32 v{u+e}, v{g+e}, v{u+e}" for e in range(4)]
            o += [f"v_exp_f32 v{g+e}, -v{g+e}" for e in range(4)]
            o += [f"v_add_f32 v{g+e}, 1.0, v{g+e}" for e in range(4)]
            o += [f"v_rcp_f32 v{g+e}, v{g+e}" for e in range(4)]
            o += [f"v_mul_f32 v{u+e}, v{g+e}, v{u+e}" for e in range(4)]
            o += [f"v_cvt_pk_bf16_f32 v{b+2*half+k}, v{u+2*k}, v{u+2*k+1}" for k in range(2)]
        o += [I(f"buffer_store_dwordx4 {vr(b)}, {vL16}, {WS}, {sH} offen offset:{1024*t} sc1", tag=tag)]
        return o

    def epi_qkv(self, src, tmp, scale, soff, off, tag):
        o = []
        base = tmp if tmp else src
        for qq in range(2):
            n = base + 8*qq
            if tmp:
                o += [f"v_accvgpr_read_b32 v{n+e}, a{src+8*qq+e}" for e in range(8)]
            if scale:
                o += [f"v_mul_f32 v{n+e}, {f32(28**-0.5/LOG2E)}, v{n+e}" for e in range(8)]
            o += [f"v_cvt_pk_bf16_f32 v{n+k}, v{n+2*k}, v{n+2*k+1}" for k in range(4)]
        for qq in range(2):
            n = base + 8*qq
            o += [f"v_permlane32_swap_b32 v{n}, v{n+2}", f"v_permlane32_swap_b32 v{n+1}, v{n+3}"]
        for qq in range(2):
            n = base + 8*qq
            o += [I(f"buffer_store_dwordx4 {vr(n)}, {vL16}, {WS}, {soff} offen offset:{off+1024*qq} sc1", tag=tag if qq else None)]
        return o

    def slabdma(self, srd, base, lds, tag, adv, so=sW2):
        return [Group([f"s_add_u32 m0, {base}, {lds}", f"s_add_u32 {so}, {so}, {adv & 0xffffffff}" if adv else "s_nop 0"]),
                I(f"buffer_load_dwordx4 v{VOW}, {srd}, {so} offen lds"),
                I(f"buffer_load_dwordx4 v{VOW+1}, {srd}, {so} offen offset:1024 lds", tag=tag)]

    def w2b(self, i):
        return self.slabdma(W2, sWB, 2048*i, f"w2b{i}", W2ROW if i else 64*896 - 11*W2ROW)

    def slab_reads(self, ad, lds, dst, tag):
        o = [I(f"ds_read_b64_tr_b16 {ar(dst+4*tt+2*mm, 2)}, v{ad+tt} offset:{lds+1024*mm}") for tt in range(2) for mm in range(2)]
        o[-1].tag = tag
        return o

    def kvdma(self, which, pp):
        base = (0 if which == "K" else VBASE) + 8192*pp
        vo = (KVO + 2 + 2*pp if (which == "K" and pp < 2) else KVO)
        pre = [f"s_add_u32 m0, s1, {base}"]
        if which == "K":
            so = f"s{sKT+pp}"
            pre += ["s_nop 0"]
        elif pp < 2:
            so = f"s{sVT+pp}"
            pre += ["s_nop 0"]
        else:
            so = f"s{sVT}"
            pre += [f"s_add_u32 {so}, s{sKT+2}, {56*512}"]
        return [Group(pre), I(f"buffer_load_dwordx4 v{vo}, {WS}, {so} offen sc1 lds"),
                I(f"buffer_load_dwordx4 v{vo+1}, {WS}, {so} offen offset:1024 sc1 lds", tag=f"{which}t{pp}")]

    def kv_all(self):
        return [f"s_lshr_b32 s1, {sW4k}, 1"] + sum((self.kvdma(w_, pp) for w_ in "KV" for pp in range(3)), [])

    POLLKV = f"buffer_load_dword v28, {vPA}, {WS}, 0 offen sc1"
    CMPKV = ["v_cmp_eq_u32 vcc, 1, v28", f"s_andn2_b64 vcc, {NEEDKV}, vcc"]
    CMPQ = ["v_cmp_eq_u32 vcc, 1, v28", f"s_andn2_b32 vcc_lo, {sNQ}, vcc_hi"]
    POLLH = f"buffer_load_dword v29, {vPB}, {WS}, 0 offen sc1"
    CMPHA = ["v_cmp_eq_u32 vcc, 1, v29", f"s_andn2_b32 vcc_lo, {sNH}, vcc_lo"]
    CMPHB = ["v_cmp_eq_u32 vcc, 1, v29", f"s_andn2_b32 vcc_lo, {sNH}, vcc_hi"]

    def rest(self, v, k, n=1):
        return [f"v_accvgpr_read_b32 v{v+i}, a{ST+k+i}" for i in range(n)]

    def qload(self):
        return [f"s_sub_u32 s1, s{sKT+2}, {56*512}"] + [
            I(f"buffer_load_dwordx4 {vr(QF+4*ks)}, {vL16}, {WS}, s1 offen offset:{1024*ks} sc1", tag=f"ql{ks}") for ks in range(2)]

    def qmask(self):
        return [WAIT(vm="ql1"), f"v_cndmask_b32 v{QF}, v{QF}, 0, {MASKA}", f"v_cndmask_b32 v{QF+1}, v{QF+1}, 0, {MASKA}",
                f"v_cndmask_b32 v{QF+6}, v{QF+6}, 0, {MASKB}", f"v_cndmask_b32 v{QF+7}, v{QF+7}, 0, {MASKB}"]

    def ones(self):
        return [WAIT(vm="Vt2"), f"ds_write_b32 v{ONE0}, v{ONE0+2}", f"ds_write_b32 v{ONE0+1}, v{ONE0+3}"]

    def att_restore(self):
        return self.rest(ONE0, 10, 3) + [f"v_mov_b32 v{ONE0+3}, 0x3f803f80"] + self.rest(KRD, 6, 2) + self.rest(VRD, 8, 2)

    def hload(self, c, dst, tag, adv):
        o = [I(f"buffer_load_dwordx4 {vr(dst+4*b)}, v{HOF+b}, {WS}, {sHL} offen sc1", tag=tag) for b in range(2)]
        return o + ([f"s_add_u32 {sHL}, {sHL}, {adv & 0xffffffff}"] if adv else [])

    def ha(self, c):
        return self.hload(c, XB+8*c, f"hl{c}", 8192 if c < 13 else 4096-13*8192)

    ORDER = [0, 8, 1, 2, 3, 4, 5, 6, 7]
    kreg = staticmethod(lambda i: K8 if i == 8 else 8*i)

    def kreads(self):
        return [I(f"ds_read_b128 {ar(self.kreg(i)+4*ks)}, v{KRD+ks} offset:{2048*i+1024*ks}", tag=f"kr{i}" if ks else None)
                for i in self.ORDER for ks in range(2)]

    def gemm1(self, q, st, S):
        p = "Q" if q else "G"
        tl = Timeline()
        first = []
        for G, fr in enumerate(S):
            for f, (acc, z, j, _, _) in enumerate(fr):
                g = tl.add(f"{MF} {acc}, {ar(ABUF+16*(G % 3)+4*f)}, {vr(XB+4*j)}, {'0' if z else acc}")
                if f == 0:
                    first.append(g)
        NS = len(S)
        first.append(len(tl.m))
        F = lambda G, k=0: first[G] + k
        if not q:
            bars = {2: "K1", 6: "K2", 10: "A2", 24: "A6", 40: "B2", 52: "B6", 68: None}
        else:
            bars = {2: "A1", 6: "A2", 10: "A4", 18: "A6", 26: "B2", 38: "B6", 50: None}
        bg = {}
        for G in range(NS):
            g0, w = first[G], first[G+1] - first[G]
            tl.pin(g0, [WAIT(lg=f"R{G}")], "pre")
            if self.lz and G in range(*self.lz):
                tl.pin(g0, self.lazy(f"s{G}"), "pre")
            elif self.lz and self.lazy_open and G == NS - 1:
                tl.pin(g0, self.lazy(None), "pre")
            if G in bars:
                gb = g0 + (1 if w == 4 else 0)
                pre, post = [], []
                if self.prof and not self.lz:
                    pre, post = ["s_memtime s[2:3]"], [f"v_writelane_b32 v21, s2, {self.nstamp}"]
                    self.nstamp += 1
                    self.names.append(f"b{G}")
                tl.pin(gb, pre + [WAIT(vm=bars[G], lg=0), "s_barrier"] + post)
                bg[G] = gb
            if G + 2 < NS:
                rd = self.step_reads(S, G+2)
                if w == 4:
                    cnt = (0, 2, 3, 3) if G in bars else (3, 3, 2, 0)
                else:
                    cnt = (2, 3, 3) if G in bars else (3, 3, 2)
                k = 0
                for gg, c in enumerate(cnt):
                    tl.pin(g0+gg, rd[k:k+c], "mem")
                    k += c
                assert k >= len(rd)
        last = len(tl.m) - 1
        info = []
        def flow(s, a, b, name, **k):
            e, bud = tl.flow(s, a, b, name=name, **k)
            info.append((name, e, bud))
            return e
        grp = lambda s: [Group([s[0], "s_nop 0"])] + s[1:]
        post = self.rest(30, 15) + [f"v_mov_b32 {vOne}, 1"] + self.ptrmove
        dbgload = f"global_load_dwordx4 v[208:211], v20, {DBG} sc1"
        dbgcmp = ["v_and_b32 v208, v208, v209", "v_and_b32 v210, v210, v211", "v_and_b32 v208, v208, v210", "v_cmp_ne_u32 vcc, 1, v208", "s_cmp_lg_u64 vcc, 0"]
        if not q:
            s = grp(st["A0"]) + [At(F(1))] + grp(st["A1"]) + [At(bg[2]+1)] + grp(st["K3"]) + [At(F(3, 2))] + grp(st["A2"])
            for k in range(3, 7):
                s += [At(F(2*k-1))] + grp(st[f"A{k}"])
            flow(s, 0, F(14)-1, "dmaA", budget=40)
            g = 0
            fill = self.fill
            for j in range(2, 28):
                pre = fill[:] if j == 14 else []
                g, b = tl.flow(pre + self.center(j), g, F(j//2)-2 + 2*(j & 1), budget=44, name=f"center{j}")
            flow(post + [f"v_add_u32 v{ADG2+t}, {2*WREG}, v{ADG+t}" for t in range(4)], F(9), F(12)-1, "post", budget=44)
            sK = sum((self.epi_qkv(16*tt, TMP+16*tt, False, sKV, 2048*tt, f"kv{tt}") for tt in range(2)), [])
            eK = flow(sK, F(14, 2), F(19), "epiK")
            flow(["v_mov_b32 v20, 0", I(dbgload, tag="dbg"), At(F(22)), WAIT(vm="dbg"), self.check("dbg"+p, dbgload, dbgcmp)], F(14), F(23, 3), "dbg")
            flow([f"s_sub_u32 s1, {sW4k}, {sWB}"] + [f"v_add_u32 v{ADK+k}, s1, v{ADW+k}" for k in range(2)] + self.masks(), F(14), F(24), "misc")
            w2a = lambda i: self.slabdma(W2, sW4k, PSLOT[i % 6], f"w2a{i}", W2ROW if i else 0)
            rdA = lambda i: [WAIT(vm=f"w2a{i}")] + self.slab_reads(ADK, PSLOT[i % 6], W2A+8*i, f"w2r{i}")
            flow(sum((w2a(i) for i in range(5)), []), eK+1, F(24), "w2a0")
            e = flow(grp(st["B0"]) + w2a(5) + [At(F(25, 2))] + self.publish(0, "kv1") + grp(st["B1"]) + grp(st["B2"]), bg[24]+1, F(30), "dmaB0")
            s = []
            for i in range(5):
                s += [At(F(30+i))] + rdA(i)
                if i:
                    s += [WAIT(lg=f"w2r{i-1}")] + w2a(5+i)
            s += [At(F(35)), WAIT(lg="w2r4")] + w2a(10) + rdA(5) + [At(F(37)), WAIT(lg="w2r5")] + w2a(11)
            flow(s, max(e+1, F(30)), F(40)-1, "w2a1", budget=28)
            for t in range(3):
                flow(self.epi_gu(ACCA[t], t, f"hA{t}"), F(30+4*t, 2), F(34+4*t, 1 if t < 2 else -1), f"epiA{t}", budget=28)
            e = flow(sum((grp(st[f"B{k}"]) for k in range(3, 7)), []) + [I(self.POLLKV, tag="pkv")], bg[40]+1, F(47), "dmaB3")
            flow(self.epi_gu(ACCA[3], 3, "hA3") + [f"s_add_u32 {sH}, {sH}, 4096"], F(42, 2), F(47), "epiA3")
            flow(sum((rdA(i) for i in range(6, 12)), []), F(46), F(52)-1, "w2r6")
            flow([At(e+1)] + self.rest(KVO, 0, 6) + self.rest(EM, 16, 8) + self.rest(HOF, 13, 2) + [At(F(50)), WAIT(vm="pkv"), self.check("kv"+p, self.POLLKV, self.CMPKV)],
                 F(47), F(52), "pollkv")
            e = flow(self.publish(1, "hA3") + self.kv_all() + sum((self.w2b(i) for i in range(6)), []), bg[52]+1, F(60), "kvdma")
            for t in range(2):
                flow(self.epi_gu(ACCB[t], t, f"hB{t}"), F(58+4*t, 2), F(62+4*t, 1), f"epiB{t}", budget=28)
            flow([At(e+1)] + self.att_restore() + [At(F(60)), I(self.POLLKV, tag="pq"), At(F(64)), WAIT(vm="pq"), self.check("q"+p, self.POLLKV, self.CMPQ)]
                 + self.qload() + [I(self.POLLH, tag="ph"), At(F(66, 2))] + self.ones(), F(57), F(68), "pollq", budget=28)
            kr = self.kreads()
            flow(kr[:14], bg[68]+1, last, "kr", maxds=3)
            self.pass1(tl, flow, last, kr[14:], q)
        else:
            s = []
            for k in range(3, 7):
                s += [At(F(2*(k-3)))] + grp(st[f"A{k}"])
            for k in range(7):
                s += [At(max(F(8+2*k), bg[18]+1 if k == 6 else 0))] + grp(st[f"B{k}"])
            flow(s, 0, F(24), "dmaQ", budget=28)
            g = 0
            for j in range(2, 28):
                pre = self.fill[:] if j == 14 else []
                g, b = tl.flow(pre + self.center(j), g, F(j)-2, name=f"center{j}")
            flow(post + self.masks(), F(20), F(28), "post")
            flow(["v_mov_b32 v20, 0", I(dbgload, tag="dbg"), At(F(33)), WAIT(vm="dbg"), self.check("dbg"+p, dbgload, dbgcmp)], F(28), F(35), "dbg")
            sA = []
            for t in range(4):
                sA += self.epi_qkv(16*t, TMP+16*(t & 1), True, sKV, 2048*(t & 1), f"q{t}")
                if t == 1:
                    sA += [f"s_add_u32 {sKV}, {sKV}, 4096"]
            flow(sA, F(28, 2), F(44), "epiQA", budget=28)
            w2a = lambda i: self.slabdma(W2, sWB, 2048*(i+2), f"w2a{i}", W2ROW if i else 0)
            self.rdA = lambda i: [WAIT(vm=f"w2a{i}")] + self.slab_reads(ADW, 2048*(i+2), W2A+8*i, f"w2r{i}")
            flow([At(F(22))] + w2a(0) + w2a(1) + [At(bg[26]+1)] + sum((w2a(i) for i in range(2, 6)), []) + [At(bg[38]+1)]
                 + sum((w2a(i) for i in range(6, 12)), []) + [I(self.POLLKV, tag="pkv"), At(F(48)), WAIT(vm="pkv"), self.check("kv"+p, self.POLLKV, self.CMPKV)],
                 F(22), F(50), "w2a", budget=28)
            qb = (("s14", 0), ("s14", 2048), ("s15", 0))
            for t in range(2):
                flow(self.epi_qkv(ACCB[t], None, True, qb[t][0], qb[t][1], f"q{4+t}"), F(44+4*t, 2), min(F(48+4*t, 1), last), f"epiQB{t}", budget=28)
            flow(self.rest(KVO, 0, 6) + self.kv_all(), bg[50]+1, last, "kvdma", budget=40)
        self.log.append(f"{p} gemm1 estimate {tl.estimate()} cycles; {info}")
        o = tl.emit()
        if q:
            o += self.stamp("g1")
            o += L(self.epi_qkv(ACCB[2], None, True, "s15", 0, "q6"))
            o += L(self.rest(EM, 16, 8) + self.rest(HOF, 13, 2) + self.att_restore())
            o += L(sum((self.rdA(i) for i in range(12)), []))
            o += self.publish(0, "q6")
            o += L([I(self.POLLKV, tag="pq"), WAIT(lg=0)] + sum((self.w2b(i) for i in range(6)), []))
            o += L(self.ones() + [WAIT(lg=0), "s_barrier"] + self.kreads())
            o += L([WAIT(vm="pq"), self.check("q"+p, self.POLLKV, self.CMPQ)] + self.qload() + [I(self.POLLH, tag="ph")])
            tl = Timeline()
            self.pass1(tl, lambda s, a, b, name, **k: tl.flow(s, a, b, name=name, **k)[0], -1, [], q)
            o += L(self.pre1) + tl.emit()
        o += self.tail1
        return o

    def pass1(self, tl, flow, last, kr, q):
        p = "Q" if q else "G"
        sb = [144, 160, 224, 240, 176]
        buf = {i: sb[k % 5] for k, i in enumerate(self.ORDER)}
        done = {}
        p0 = last + 1
        for i in self.ORDER:
            g = tl.add(f"{MF} {vr(buf[i], 16)}, {ar(self.kreg(i))}, {vr(QF)}, 0")
            tl.pin(g, [WAIT(lg=f"kr{i}")], "pre")
            done[i] = tl.add(f"{MF} {vr(buf[i], 16)}, {ar(self.kreg(i)+4)}, {vr(QF+4)}, {vr(buf[i], 16)}")
        end = len(tl.m) - 1
        merge = lambda a, b: [f"v_cndmask_b32 v{a+r}, v{a+r}, v{b+r}, s[{MASK0+2*r}:{MASK0+2*r+1}]" for r in range(16)]
        self.merge = merge
        def mx(b, init):
            s = []
            for k in range(8):
                m = 2 + (k & 1)
                s.append(f"v_max3_f32 v{m}, v{b+2*k}, v{b+2*k+1}, v{b+2*k if init and k < 2 else m}")
            return s
        hchk = [WAIT(vm="ph"), self.check("ha"+p, self.POLLH, self.CMPHA)]
        if not q:
            flow(self.epi_gu(ACCB[2], 2, "hB2"), last-13, p0+1, "epiB2", budget=28)
            tl.pin(last, self.qmask(), "tail")
            for k, x in enumerate(kr):
                tl.pin(p0+k//2, [x], "mem")
            flow(hchk + sum((self.ha(c) for c in range(3)), []), last-3, p0+3, "ha0", budget=40)
            e = flow(self.epi_gu(ACCB[3], 3, "hB3"), p0+1, p0+7, "epiB3", budget=40)
            s = [At(e)]
        else:
            self.pre1 = self.qmask()
            s = []
        s += [At(done[8]+2)] + merge(buf[0], buf[8]) + mx(buf[0], True)
        flow(s, p0, p0+9, "m0", budget=40)
        for k, i in enumerate((1, 2, 3, 4, 5)):
            flow(mx(buf[i], False), max(done[i]+2, p0+10), min(p0+13+2*k, end), f"m{i}", budget=36)
        t = mx(buf[6], False) + (hchk if q else []) + mx(buf[7], False)
        t += ["v_max_f32 v2, v2, v3", "v_mov_b32 v3, v2", "v_permlane32_swap_b32 v2, v3", "v_max_f32 v2, v2, v3"]
        t += [f"v_sub_f32 v{NEGB+r}, 0, v2" for r in range(16)]
        self.tail1 = L(t)

    def pass2(self, q):
        o = self.stamp("p1")
        NEG, O = vr(NEGB, 16), vr(240, 16)
        sbuf = {0: 144, 8: 160, 1: 176, 2: 160, 3: 144, 4: 176, 5: 160, 6: 144, 7: 176}
        vbuf = {i: 72 + 8*(k % 5) for k, i in enumerate(self.ORDER)}
        Sm = lambda i: [f"{MF} {vr(sbuf[i], 16)}, {ar(self.kreg(i))}, {vr(QF)}, {NEG}",
                        f"{MF} {vr(sbuf[i], 16)}, {ar(self.kreg(i)+4)}, {vr(QF+4)}, {vr(sbuf[i], 16)}"]
        Vr = lambda i: [f"ds_read_b64_tr_b16 {ar(vbuf[i]+4*s_+2*mm, 2)}, v{VRD+mm} offset:{2048*i+256*s_}" for s_ in range(2) for mm in range(2)]
        PV = lambda i, P, z=False: [f"{MF} {O}, {ar(vbuf[i])}, {vr(P)}, {'0' if z else O}", f"{MF} {O}, {ar(vbuf[i]+4)}, {vr(P+4)}, {O}"]
        side = sum((self.ha(c) for c in range(0 if q else 3, 14)), []) + sum((self.w2b(i) for i in range(6, 14)), [])
        def body(b, P, ms, rds, nside):
            s = []
            ms, rds = list(ms), list(rds)
            for k in range(4):
                s += [f"v_exp_f32 v{b+4*k+e}, v{b+4*k+e}" for e in range(4)]
                if k:
                    s += [f"v_cvt_pk_bf16_f32 v{P+2*k-2+e}, v{b+4*k-4+2*e}, v{b+4*k-3+2*e}" for e in range(2)]
                if ms:
                    s += [ms.pop(0)]
                    if rds:
                        s += [rds.pop(0)]
                    for _ in range(nside):
                        if side:
                            s += [side.pop(0)]
            s += rds
            s += [f"v_cvt_pk_bf16_f32 v{P+6+e}, v{b+12+2*e}, v{b+13+2*e}" for e in range(2)]
            return s
        tk = lambda n: [side.pop(0) for _ in range(n)]
        o += Sm(0) + Vr(0) + tk(3) + Sm(8) + Vr(8) + tk(3) + Sm(1) + Vr(1) + tk(3)
        o += self.merge(144, 160)
        o += body(144, 224, Sm(2), Vr(2), 2)
        o += [f"v_and_b32 v{232+k}, v{EM+k}, v{224+k}" for k in range(8)] + [f"v_xor_b32 v{224+k}, v{232+k}, v{224+k}" for k in range(8)]
        PB = {1: EM, 2: 224, 3: EM, 4: 224, 5: EM, 6: 224, 7: EM}
        if not q:
            o += self.publish(2, "hB3")
        o += body(176, PB[1], PV(0, 224, True) + PV(8, 232), [], 2)
        for i in range(2, 8):
            ms = (Sm(i+1) if i < 7 else []) + PV(i-1, PB[i-1])
            o += body(sbuf[i], PB[i], ms, Vr(i+1) if i < 7 else [], 2)
        o += PV(7, PB[7]) + side
        o += [I(self.POLLH, tag="phb")]
        o += self.stamp("p2")
        o += [f"v_cndmask_b32 v2, 0, v240, {MASKA}", f"v_cndmask_b32 v2, v2, v252, {MASKB}", "v_mov_b32 v3, v2",
              "v_permlane32_swap_b32 v2, v3", "v_add_f32 v2, v2, v3", "v_rcp_f32 v2, v2",
              f"v_mul_f32 v2, {f32(LOG2E**-3)}, v2", f"v_cndmask_b32 v3, v2, 0, {MASKA}", f"v_cndmask_b32 v4, v2, 0, {MASKB}"]
        for r in (4, 5, 6, 7, 8, 9, 10, 11, 0, 1, 2, 3, 12, 13, 14, 15):
            o += [f"v_mul_f32 v{240+r}, v{3 if r < 4 else 4 if r >= 12 else 2}, v{240+r}"]
        o += [f"v_cvt_pk_bf16_f32 v{232+k}, v{240+2*k}, v{241+2*k}" for k in range(8)]
        o += [I(f"buffer_store_dwordx4 {vr(232+4*m)}, {vL16}, {WS}, {sOst} offen offset:{1024*m} sc1", tag=f"o{m}") for m in range(2)]
        return L(o)

    def phase4(self, q):
        p = "Q" if q else "G"
        o = [f"s_cmp_eq_u32 {sNH}, 0", f"s_cbranch_scc1 L_fin{p}"]
        self.slow += [f"L_fin{p}:", "s_waitcnt vmcnt(0)",
                      f"buffer_store_dword {vOne}, {vFO}, {WS}, {sFlag} offen offset:192 sc1", "s_endpgm"]
        tl = Timeline()
        HBR, OR_, ACS = 144, 32, 112
        def kstep(a, b, acc, z):
            g = []
            for sg in range(4):
                d = ar(acc+16*sg, 16)
                g.append(tl.add(f"{MF} {d}, {ar(a+4*(sg >> 1))}, {vr(b+4*(sg & 1))}, {'0' if z else d}"))
            return g[0]
        gA = [kstep(W2A+8*c, XB+8*c, 0, c == 0) for c in range(12)]
        bb = lambda k: ABUF + 8*(k % 6)
        gB = [kstep(bb(c), HBR+8*c if c < 14 else XB+8*(c-2), 0, False) for c in range(16)]
        last = len(tl.m) - 1
        for c in range(12):
            tl.pin(gA[c], [WAIT(vm=f"hl{c}")], "pre")
        for c in range(16):
            tl.pin(gB[c], [WAIT(vm=f"hb{c}" if c < 14 else None, lg=f"rb{c}")], "pre")
        if self.prof:
            for nm, g in (("hbchk", gA[1]), ("4a", gB[0]), ("4b7", gB[7])):
                tl.pin(g, self.stamp(nm), "pre")
        tl.pin(gA[4], ["s_barrier"])
        hB = [WAIT(vm="phb"), self.check("hb"+p, self.POLLH, self.CMPHB)]
        for c in range(14):
            hB += self.hload(c, HBR+8*c, f"hb{c}", 8192 if c < 13 else 0)
        e, _ = tl.flow(hB, 0, gA[11])
        e2, _ = tl.flow(self.publish(3, "o1"), gA[6], gA[11])
        sOL, sXO, sNO, sWO, sLT = "s66", "s67", "s68", "s75", "s76"
        vRW, vRR_, vSW, vSR, vOut, vO, vLT = 2, 5, 6, 11, 12, 9, 24
        t = ["s_mov_b32 s12, s28", "s_mov_b32 s13, s29", f"s_mov_b32 s14, {448*896}", "s_mov_b32 s15, 0x20000",
             "s_mov_b32 s16, s30", "s_mov_b32 s17, s31", "s_mov_b32 s18, 1835008", "s_mov_b32 s19, 0x20000",
             f"s_lshr_b32 s69, {sW4k}, 12", f"s_xor_b32 {sLT}, s69, 1", f"s_mul_i32 {sLT}, {sLT}, 12288",
             f"s_sub_u32 s70, {sLT}, {sWB}", f"v_add_u32 v{vLT}, s70, v{ADW}", f"v_add_u32 v{vLT+1}, s70, v{ADW+1}",
             f"s_mul_i32 {sWO}, s69, {112*896}", f"s_lshl_b32 s70, {sCT}, 7", f"s_add_u32 {sWO}, {sWO}, s70",
             f"s_lshl_b32 {sOL}, {sRT}, 16", "s_lshl_b32 s71, s69, 13", f"s_add_u32 {sOL}, {sOL}, s71", f"s_add_u32 {sOL}, {sOL}, {OB}",
             "s_and_b32 s71, s69, 1", f"s_lshl_b32 s72, {sRT}, 1", "s_add_u32 s72, s72, s71", f"s_mul_i32 {sXO}, s72, 28672",
             f"s_add_u32 {sXO}, {sXO}, s70", "s_lshr_b32 s72, s69, 1", "s_lshl_b32 s72, s72, 6", f"s_add_u32 {sXO}, {sXO}, s72",
             "s_lshl_b32 s72, s69, 2", f"s_lshl_b32 {sNO}, 0x000f000f, s72",
             "s_lshl_b32 s71, s71, 15", f"v_add_u32 v{vO}, s71, {vL16}", f"v_xor_b32 v{vO+1}, 0x8000, v{vO}",
             "v_and_b32 v13, 31, v0", "v_mul_u32_u24 v13, 896, v13", "v_lshrrev_b32 v12, 5, v0", f"v_lshl_add_u32 v{vOut}, v12, 4, v13"]
        for sg in range(4):
            t += [f"s_xor_b32 s72, s69, {sg}", "s_mul_i32 s73, s72, 12288", f"s_mul_i32 s74, s72, {WREG}", f"s_add_u32 s74, s74, {BIG+16384}",
                  f"v_add_u32 v{vRW+sg-1 if sg else vRR_}, s73, {vL16}", f"v_add_u32 v{vSW+sg-1 if sg else vSR}, s74, {vL16}"]
        et, _ = tl.flow(t, gA[0], gA[11])
        late = self.slabdma(W2, sLT, 0, "w2b14", -192*896) + self.slabdma(W2, sLT, 2048, "w2b15", W2ROW)
        el, _ = tl.flow(late, max(e, et, gA[4]) + 1, gB[1])
        for c in range(16):
            g0 = gB[c-3] if c >= 3 else gA[9+c]
            rd = self.slab_reads(ADW, 2048*c, bb(c), f"rb{c}") if c < 14 else self.slab_reads(vLT, 2048*(c-14), bb(c), f"rb{c}")
            tl.flow([WAIT(vm=f"w2b{c}")] + rd, g0, g0+3, maxds=2)
        XR = 96
        tl.flow([I(f"buffer_load_dwordx4 {vr(XR+4*k)}, v{vOut}, {X}, {sXO} offen offset:{32*k}") for k in range(2)], max(el+1, gB[0]), gB[2])
        rows = [8*((7*hh) >> 1) + 16*m for hh in range(4) for m in range(2)]
        wo = []
        for k in range(8):
            wo += [At(gB[k]+1)] + self.slabdma(WO, sWB, 2048*k, f"wo{k}", (rows[k]-rows[k-1])*896 if k else 0, so=sWO)
        tl.flow(wo, max(el+1, gB[0]), last)
        pollO = f"buffer_load_dword v29, {vPB}, {WS}, 0 offen offset:128 sc1"
        cmpO = ["v_cmp_eq_u32 vcc, 1, v29", f"s_andn2_b32 vcc_lo, {sNO}, vcc_lo"]
        ol = [At(gB[4]), I(pollO, tag="po"), At(gB[9]), WAIT(vm="po"), self.check("o"+p, pollO, cmpO)]
        for k in range(8):
            ol += [I(f"buffer_load_dwordx4 {vr(OR_+8*k+4*b)}, v{vO+b}, {WS}, {sOL} offen offset:{1024*(k & 3)} sc1", tag=f"ol{k}") for b in range(2)]
            if k == 3:
                ol += [f"s_add_u32 {sOL}, {sOL}, 4096"]
        tl.flow(ol, gB[4], last)
        xr = [f"v_permlane32_swap_b32 v{XR+4*k+e}, v{XR+4*k+e+2}" for k in range(2) for e in range(2)]
        XF = 112
        for k in range(8):
            xr += [f"v_lshlrev_b32 v{XF+2*k}, 16, v{XR+k}", f"v_and_b32 v{XF+2*k+1}, 0xffff0000, v{XR+k}"]
        tl.flow(xr, gB[8], last)
        self.log.append(f"{p} phase4 estimate {tl.estimate()}")
        o += tl.emit()
        o += self.stamp("4b")
        def reduce(acc, vw, vrd, dst, pre=()):
            s = []
            for sg in (1, 2, 3):
                s += [f"ds_write_b128 v{vw+sg-1}, {ar(acc+16*sg+4*k)} offset:{4096*(sg-1)+1024*k}" for k in range(4)]
            s += list(pre)
            s += [f"v_accvgpr_read_b32 v{dst+r}, a{acc+r}" for r in range(16)]
            s += [WAIT(lg=0), "s_barrier"]
            s += [f"ds_read_b128 {vr(dst+16+16*sg+4*k)}, v{vrd} offset:{4096*sg+1024*k}" for k in range(4) for sg in range(3)]
            for k in range(4):
                for e in range(4):
                    r = 4*k + e
                    s += [f"v_add_f32 v{dst+16+r}, v{dst+16+r}, v{dst+32+r}", f"v_add_f32 v{dst+r}, v{dst+r}, v{dst+48+r}"]
                s += [f"v_add_f32 v{dst+4*k+e}, v{dst+4*k+e}, v{dst+16+4*k+e}" for e in range(4)]
            return s
        Bv, Sv = 128, 192
        o += reduce(0, vRW, vRR_, Bv)
        T = Bv + 16
        for k in range(4):
            r = range(4*k, 4*k+4)
            o += [f"v_mul_f32 v{T+e}, {f32(-1/LOG2E)}, v{Bv+e}" for e in r] + [f"v_exp_f32 v{T+e}, v{T+e}" for e in r]
            o += [f"v_add_f32 v{T+e}, 1.0, v{T+e}" for e in r] + [f"v_rcp_f32 v{T+e}, v{T+e}" for e in r]
            o += [f"v_mul_f32 v{Bv+e}, v{Bv+e}, v{T+e}" for e in r]
        o += self.stamp("bred")
        tl = Timeline()
        g5 = [kstep(bb(k), OR_+8*k, ACS, k == 0) for k in range(8)]
        for k in range(8):
            rd = [WAIT(vm=f"wo{k}")] + self.slab_reads(ADW, 2048*k, bb(k), f"ro{k}")
            if k < 3:
                o += rd
            else:
                tl.flow(rd, g5[k-3], g5[k-3]+3, maxds=2)
            tl.pin(g5[k], [WAIT(vm=f"ol{k}", lg=f"ro{k}")], "pre")
        o += tl.emit()
        o += self.stamp("5")
        o += reduce(ACS, vSW, vSR, Sv)
        o += [f"v_fma_f32 v{Sv+r}, v{Sv+r}, v{Bv+r}, v{XF+r}" for r in range(16)]
        for qq in range(2):
            n = Sv + 8*qq
            o += [f"v_cvt_pk_bf16_f32 v{n+k}, v{n+2*k}, v{n+2*k+1}" for k in range(4)]
        for qq in range(2):
            n = Sv + 8*qq
            o += [f"v_permlane32_swap_b32 v{n}, v{n+2}", f"v_permlane32_swap_b32 v{n+1}, v{n+3}"]
        o += [f"buffer_store_dwordx4 {vr(Sv+8*qq)}, v{vOut}, {OUT}, {sXO} offen offset:{32*qq}{self.oflag}" for qq in range(2)]
        return L(o)

    def profile_dump(self):
        if not self.prof:
            return []
        mv = lambda a, lane: [f"v_accvgpr_read_b32 v20, a{a}", "s_nop 0", "v_readfirstlane_b32 s2, v20", "s_nop 3", f"v_writelane_b32 v21, s2, {lane}"]
        o = self.stamp("end")
        return o + L(mv(250, 63) + mv(251, 62) + [
            "s_memrealtime s[2:3]", WAIT(lg=0), "v_writelane_b32 v21, s2, 61",
            "s_getreg_b32 s2, hwreg(HW_REG_XCC_ID)", "v_writelane_b32 v21, s2, 60", f"s_mov_b32 s2, {self.nstamp}",
            "v_writelane_b32 v21, s2, 59", f"s_lshl_b32 s2, {sFlag}, 6", f"s_add_u32 s2, s2, {PROF}", "v_lshlrev_b32 v20, 2, v0",
            f"buffer_store_dword v21, v20, {WS}, s2 offen"])

    def path(self, q):
        st, S = self.stages(q), self.steps(q)
        self.nstamp = 0
        self.names = []
        self.finelist = []
        o = self.prologue(q, st, S)
        o += self.stamp("pro") + L(sum(self.finelist, [])) + self.gemm1(q, st, S)
        o += self.pass2(q) + self.stamp("att")
        if self.stop == "att":
            o += self.publish(3, "o1")
        else:
            o += self.phase4(q)
        o += self.profile_dump() + L(["s_endpgm"])
        if self.prof:
            self.log.append(("Q" if q else "G") + " stamps: " + " ".join(self.names))
        return o

    def build(self):
        ent = self.entry()
        text = []
        notes = []
        for q in (False, True):
            log = []
            code, auto, nops = finalize(ent + self.path(q), log)
            notes.append("; stamps " + ("Q" if q else "G") + ": " + " ".join(self.names))
            self.log += [f"path {'Q' if q else 'G'}: {len(code)} instrs, {auto} auto waits, {nops} nop states"] + log
            if q:
                k = next(i for i, x in enumerate(code) if x.text == "L_Q:")
                code = code[k:]
            text += [x.text for x in code]
        text += [x if isinstance(x, str) else x.text for x in self.slow] + ["L_exit:"]
        head = open(REF).read().split("; @launch")[0]
        body = "\n".join(t if t.endswith(":") else "    " + t for t in text)
        return (head + "; @launch grid=(256,1,1) block=(256,1,1) lds=163840\n" + ("\n".join(notes) + "\n" if self.prof else "") +
                f'.amdgcn_target "amdgcn-amd-amdhsa--gfx950"\n.text\n.globl {KNAME}\n.p2align 8\n.type {KNAME},@function\n{KNAME}:\n'
                f"{body}\n    s_endpgm\n"
                f'.section .rodata,"a"\n.p2align 6\n.amdhsa_kernel {KNAME}\n  .amdhsa_next_free_vgpr 512\n  .amdhsa_next_free_sgpr 102\n'
                "  .amdhsa_accum_offset 256\n  .amdhsa_group_segment_fixed_size 0\n  .amdhsa_kernarg_size 80\n"
                "  .amdhsa_user_sgpr_count 2\n  .amdhsa_user_sgpr_kernarg_segment_ptr 1\n  .amdhsa_system_sgpr_workgroup_id_x 1\n"
                ".end_amdhsa_kernel\n")


if __name__ == "__main__":
    import argparse
    ap = argparse.ArgumentParser()
    ap.add_argument("out")
    ap.add_argument("--map", default="8x4")
    ap.add_argument("--stop")
    ap.add_argument("--prof", action="store_true")
    ap.add_argument("-v", action="store_true")
    ap.add_argument("--exp", default="")
    a = ap.parse_args()
    g = Gen(a.map, a.stop, a.prof, tuple(a.exp.split(',')))
    open(a.out, "w").write(g.build())
    for l in g.log:
        if a.v or not l.startswith(("nop", "auto")):
            print(l)
```

```python
import re

REG = re.compile(r"^([vas])(\d+)$|^([vas])\[(\d+):(\d+)\]$")
TRANS = ("v_exp_f32", "v_rcp_f32", "v_rsq_f32", "v_log_f32", "v_sqrt_f32")
NODST_S = ("s_cmp", "s_waitcnt", "s_barrier", "s_nop", "s_branch", "s_cbranch", "s_endpgm", "s_setprio",
           "s_bitcmp", "s_sleep")


def regs_of(tok):
    tok = tok.strip().lstrip("-").strip("|")
    m = REG.match(tok)
    if m:
        if m.group(1):
            return [(m.group(1), int(m.group(2)))]
        return [(m.group(3), k) for k in range(int(m.group(4)), int(m.group(5)) + 1)]
    if tok in ("vcc",):
        return [("s", 106), ("s", 107)]
    if tok == "vcc_lo":
        return [("s", 106)]
    if tok == "vcc_hi":
        return [("s", 107)]
    if tok == "m0":
        return [("s", 124)]
    if tok == "exec":
        return [("s", 126), ("s", 127)]
    return []


class Ins:
    def __init__(self, text, tag=None, opt=False, vm=None, lg=None, force=False):
        self.text = text
        self.tag = tag
        self.opt = opt
        self.vm, self.lg = vm, lg
        self.force = force
        self.parse()

    def parse(self):
        t = self.text
        self.rd, self.wr = set(), set()
        self.mA = self.mB = self.mC = self.mD = ()
        self.passes = 0
        self.wide_store = False
        self.lds_dma = False
        if t == "WAIT":
            self.kind, self.cost = "wait", 4
            return
        if t.endswith(":") or t.startswith("."):
            self.kind, self.cost = "label", 0
            return
        mn, _, rest = t.partition(" ")
        self.mn = mn
        parts = [p.strip() for p in rest.split(",")] if rest else []
        if parts:
            last = parts[-1].split()
            parts[-1] = last[0]
            mods = last[1:]
        else:
            mods = []
        ops = [regs_of(p) for p in parts]
        flat = lambda L: set(r for o in L for r in o)
        if mn.startswith("v_mfma"):
            self.kind = "mfma"
            self.passes = 8 if "32x32x16" in mn else (4 if "16x16x32" in mn else 2)
            self.cost = 8 if self.passes > 2 else 4
            self.mD, self.mA, self.mB, self.mC = ops[0], ops[1], ops[2], ops[3]
            self.wr, self.rd = set(ops[0]), flat(ops[1:])
        elif mn.startswith("v_"):
            base = mn.replace("_e32", "").replace("_e64", "")
            self.kind = "valu"
            self.trans = base in TRANS
            self.cost = 8 if self.trans or base.startswith("v_permlane") else 4
            if base.startswith("v_permlane"):
                self.wr = self.rd = flat(ops)
            elif base == "v_nop":
                pass
            else:
                self.wr, self.rd = set(ops[0]), flat(ops[1:])
                if base.startswith("v_fmac") or base.startswith("v_writelane"):
                    self.rd = self.rd | self.wr
        elif mn.startswith("ds_"):
            self.kind = "ds"
            if mn.startswith("ds_read"):
                self.wr, self.rd = set(ops[0]), flat(ops[1:])
                self.cost = 4
            else:
                self.rd = flat(ops)
                self.cost = 20 if "b128" in mn else 12
        elif mn.startswith("buffer_") or mn.startswith("global_"):
            self.kind, self.cost = "vmem", 8
            if "lds" in mods:
                self.lds_dma = True
                self.rd = flat(ops) | {("s", 124)}
            elif "_load" in mn:
                self.wr, self.rd = set(ops[0]), flat(ops[1:])
            else:
                self.rd = flat(ops)
                if "x4" in mn or "x3" in mn:
                    self.wide_store = True
                    self.sdata = set(ops[0])
        elif mn.startswith("s_load") or mn.startswith("s_memtime") or mn.startswith("s_memrealtime"):
            self.kind, self.cost = "smem", 4
            self.wr, self.rd = set(ops[0]), flat(ops[1:])
        elif mn.startswith("s_"):
            self.kind, self.cost = "salu", 4
            if mn == "s_barrier":
                self.kind, self.cost = "bar", 8
            elif mn == "s_nop":
                self.cost = 4 * (int(parts[0]) + 1)
            if any(mn.startswith(p) for p in NODST_S):
                self.rd = flat(ops)
            else:
                self.wr, self.rd = set(ops[0]), flat(ops[1:])
                if mn.startswith("s_and_saveexec") or mn.startswith("s_or_saveexec"):
                    self.wr |= {("s", 126), ("s", 127)}
        else:
            raise ValueError("unknown instruction: " + t)

    def states(self):
        if self.kind == "label":
            return 0
        if self.kind == "salu" and self.mn == "s_nop":
            return int(self.text.split()[1]) + 1
        return 1

    def __repr__(self):
        return self.text


def I(text, **k):
    return Ins(text, **k)


def WAIT(vm=None, lg=None, force=False):
    return Ins("WAIT", vm=vm, lg=lg, force=force)


class Group:
    def __init__(self, items):
        self.items = [x if isinstance(x, Ins) else I(x) for x in items]
        self.cost = sum(x.cost for x in self.items)
        self.kind = "valu" if any(x.kind == "valu" for x in self.items) else self.items[0].kind
        self.first_kind = self.items[0].kind


class At:
    def __init__(self, g):
        self.g = g


class By(At):
    pass


def bigvm(it):
    items = it.items if isinstance(it, Group) else [it]
    return any(x.kind == "vmem" and "x4" in x.mn for x in items)


def L(lines):
    return [x if isinstance(x, (Ins, Group, At)) else I(x) for x in lines]


def hoist_m0(stream):
    out = []
    for x in stream:
        if isinstance(x, Ins) and ("s", 124) in x.wr:
            k = len(out)
            while k > 0:
                y = out[k - 1]
                ys = y.items if isinstance(y, Group) else ([] if isinstance(y, At) else [y])
                if any(z.lds_dma or (z.wr & x.rd) for z in ys):
                    break
                k -= 1
            out.insert(k, x)
        else:
            out.append(x)
    return out


class Timeline:
    def __init__(self, budget=24):
        self.m, self.pre, self.head, self.mem, self.tail = [], [], [], [], []
        self.budget = budget
        self.vmg = set()

    def add(self, ins):
        self.m.append(ins if isinstance(ins, Ins) else I(ins))
        self.pre.append([]); self.head.append([]); self.mem.append([]); self.tail.append([])
        return len(self.m) - 1

    def cost(self, g):
        c = sum(x.cost for x in self.head[g] + self.mem[g] + self.tail[g])
        if g + 1 < len(self.m):
            c += sum(x.cost for x in self.pre[g + 1])
        return c

    def nds(self, g):
        return sum(1 for x in self.mem[g] if getattr(x, "kind", "") == "ds")

    def pin(self, g, items, where="head"):
        getattr(self, where)[g].extend(L(items))

    def flow(self, stream, start, end=None, budget=None, maxds=3, name="", sp=0):
        stream = L(stream)
        end = len(self.m) - 1 if end is None else end
        b = budget or self.budget
        while True:
            place, g, in_tail = [], start, False
            extra = {}
            dsx = {}
            vmx = set()
            ok = True
            for it in stream:
                if isinstance(it, By):
                    if g > it.g:
                        ok = False
                        break
                    continue
                if isinstance(it, At):
                    if it.g > g:
                        g, in_tail = it.g, False
                    continue
                fk = it.first_kind if isinstance(it, Group) else it.kind
                is_valu = it.kind == "valu"
                while True:
                    if g > end:
                        ok = False
                        break
                    used = self.cost(g) + extra.get(g, 0)
                    fits = used + it.cost <= b or (used == 0)
                    if fk == "ds" and self.nds(g) + dsx.get(g, 0) >= maxds:
                        fits = False
                    if fk in ("ds", "vmem") and in_tail:
                        fits = False
                    if sp and bigvm(it) and any(h in self.vmg or h in vmx for h in range(g - sp + 1, g + sp)):
                        fits = False
                    if fits:
                        break
                    g, in_tail = g + 1, False
                if not ok:
                    break
                where = "tail" if (is_valu or in_tail) else "mem"
                in_tail = where == "tail"
                place.append((g, where, it))
                extra[g] = extra.get(g, 0) + it.cost
                if fk == "ds":
                    dsx[g] = dsx.get(g, 0) + 1
                if bigvm(it):
                    vmx.add(g)
            if ok:
                break
            b += 4
            if b > 400:
                raise RuntimeError("stream does not fit: " + name)
        for g, where, it in place:
            getattr(self, where)[g].append(it)
        self.vmg |= vmx
        return (place[-1][0] if place else start), b

    def vflow(self, stream, start=0, sp=lambda g: 2.0, dsper=4):
        stream = hoist_m0(L(stream))
        g, nxt = start, getattr(self, "vnext", -9.0)
        where = {}
        for it in stream:
            if isinstance(it, By):
                assert g <= it.g, ("memory stream misses its deadline", g, it.g, where)
                continue
            if isinstance(it, At):
                g = max(g, it.g)
                continue
            if bigvm(it):
                while g < nxt - 1e-6:
                    g += 1
                nxt = (nxt if nxt > g - 1 else g) + sp(g)
            elif it.kind == "ds":
                while self.nds(g) >= dsper:
                    g += 1
            self.mem[g].append(it)
            for y in (it.items if isinstance(it, Group) else [it]):
                if y.tag:
                    where[y.tag] = g
        self.vnext = nxt
        where["end"] = g
        return where

    def edf(self, streams, base=24, log=None):
        n = len(self.m)
        S = []
        for name, items, a, b in streams:
            its, rel, hard = [], [], []
            r = a
            for it in L(items):
                if isinstance(it, By):
                    if its:
                        hard[-1] = min(hard[-1], it.g)
                elif isinstance(it, At):
                    r = max(r, it.g)
                else:
                    its.append(it); rel.append(r); hard.append(min(b, n - 1))
            for k in range(len(its) - 2, -1, -1):
                hard[k] = min(hard[k], hard[k + 1])
            eff, e = [0.0]*len(its), 1e9
            for k in range(len(its) - 1, -1, -1):
                e = min(hard[k], e - its[k].cost/14.0)
                eff[k] = e
            for k in range(len(its)):
                assert rel[k] <= hard[k], (name, k, its[k], rel[k], hard[k])
            S.append((name, its, rel, hard, eff))
        fixed = [self.cost(g) for g in range(n)]
        B = [base]*n
        while True:
            ptr = [0]*len(S)
            place = [[] for _ in range(n)]
            idle = [False]*n
            miss = None
            for g in range(n):
                used, blocked = fixed[g], set()
                while True:
                    c = [k for k, s in enumerate(S) if ptr[k] < len(s[1]) and k not in blocked and s[2][ptr[k]] <= g]
                    if not c:
                        break
                    k = min(c, key=lambda k: S[k][4][ptr[k]])
                    it = S[k][1][ptr[k]]
                    if used + it.cost <= B[g]:
                        place[g].append(it); used += it.cost; ptr[k] += 1
                    else:
                        blocked.add(k)
                idle[g] = not blocked
                late = [k for k, s in enumerate(S) if ptr[k] < len(s[1]) and s[3][ptr[k]] <= g]
                if late:
                    miss = g
                    break
            if miss is None:
                break
            a = miss
            while a > 0 and not idle[a - 1]:
                a -= 1
            h = min(range(miss, a - 1, -1), key=lambda x: max(B[x], fixed[x] - 3))
            B[h] = max(B[h], fixed[h]) + 4 if B[h] < fixed[h] else B[h] + 4
        for g in range(n):
            self.tail[g].extend(place[g])

    def slack(self, first):
        return [sum(max(0, 24 - self.cost(g)) for g in range(first[k], first[k + 1])) for k in range(len(first) - 1)]

    def profile(self, first):
        return [sum(max(32, 8 + self.cost(g)) for g in range(first[k], first[k + 1])) for k in range(len(first) - 1)]

    def emit(self):
        out = []
        def ex(lst):
            for x in lst:
                if isinstance(x, Group):
                    out.extend(x.items)
                else:
                    out.append(x)
        for g, m in enumerate(self.m):
            ex(self.pre[g]); out.append(m); ex(self.head[g]); ex(self.mem[g]); ex(self.tail[g])
        return out

    def estimate(self):
        return sum(max(32, 8 + self.cost(g)) for g in range(len(self.m)))


def flat(seq):
    out = []
    for x in L(seq):
        if isinstance(x, Group):
            out.extend(x.items)
        elif isinstance(x, At):
            continue
        else:
            out.append(x)
    return out


def resolve_waits(code, log):
    out = []
    vm_n = lg_n = 0
    vm_done = lg_done = 0
    tags = {}
    pend = {}
    smem_out = False
    auto = 0

    def need(spec, cnt):
        if spec is None:
            return None
        if spec == 0:
            return (vm_n if cnt == "vm" else lg_n)
        lst = spec if isinstance(spec, (list, tuple)) else [spec]
        idx = 0
        for t in lst:
            c, k = tags[t]
            assert c == cnt, (t, c, cnt)
            idx = max(idx, k)
        return idx

    def emit_wait(v, l, force=False, zero_vm=False):
        nonlocal vm_done, lg_done, smem_out
        parts = []
        if v is not None and (v > vm_done or force or zero_vm):
            n = vm_n - v
            if n > 63:
                n = 63
            parts.append(f"vmcnt({n})")
            vm_done = max(vm_done, vm_n - n)
        if l is not None and (l > lg_done or force or smem_out):
            n = 0 if smem_out else min(lg_n - l, 15)
            parts.append(f"lgkmcnt({n})")
            lg_done = max(lg_done, lg_n - n)
            if n == 0:
                smem_out = False
        if parts:
            out.append(I("s_waitcnt " + " ".join(parts)))

    for ins in code:
        if ins.kind == "wait":
            emit_wait(need(ins.vm, "vm"), need(ins.lg, "lg"), ins.force, zero_vm=(ins.vm == 0))
            continue
        v = l = None
        for r in ins.rd | ins.wr:
            if r in pend:
                c, k = pend[r]
                if c == "vm" and k > vm_done:
                    v = max(v or 0, k)
                elif c == "lg" and k > lg_done:
                    l = max(l or 0, k)
        if v is not None or l is not None:
            auto += 1
            log.append(f"auto wait before: {ins.text}")
            emit_wait(v, l)
        out.append(ins)
        if ins.kind == "vmem":
            if not ins.opt:
                vm_n += 1
                assert vm_n - vm_done <= 63, "more than 63 vector-memory ops in flight at " + ins.text
            if ins.tag:
                assert not ins.opt
                tags[ins.tag] = ("vm", vm_n)
            for r in ins.wr:
                pend[r] = ("vm", vm_n)
        elif ins.kind == "smem" and ins.opt:
            pass
        elif ins.kind in ("ds", "smem"):
            lg_n += 1
            if ins.kind == "smem":
                smem_out = True
            if ins.tag:
                tags[ins.tag] = ("lg", lg_n)
            for r in ins.wr:
                pend[r] = ("lg", lg_n)
    return out, auto


def required(p, c):
    n = 0
    vg = lambda s: {r for r in s if r[0] != "s"}
    sg = lambda s: {r for r in s if r[0] == "s"}
    if p.kind == "valu":
        w = vg(p.wr)
        if c.kind == "mfma" and w & c.rd:
            n = max(n, 2)
        if c.kind == "valu":
            if c.mn.startswith("v_permlane") and w & c.rd:
                n = max(n, 2)
            if c.mn.startswith(("v_readfirstlane", "v_readlane")) and w & c.rd:
                n = max(n, 1)
            if p.trans and w & c.rd:
                n = max(n, 1)
            if sg(p.wr) & c.rd:
                n = max(n, 2)
        if c.kind == "vmem" and sg(p.wr) & c.rd:
            n = max(n, 5)
    elif p.kind == "mfma":
        tab = {2: (2, 4, 5, 5, 1), 4: (0, 6, 8, 8, 3), 8: (0, 10, 12, 12, 7)}[p.passes]
        if c.kind == "mfma":
            if p.wr & set(c.mC):
                n = max(n, tab[0] if (list(c.mC) == list(p.mD) and c.passes == p.passes) else tab[1])
            if p.wr & (set(c.mA) | set(c.mB)):
                n = max(n, tab[2])
            if p.wr & c.wr and not (p.wr & set(c.mC)) and c.passes < p.passes:
                n = max(n, tab[3])
        elif c.kind in ("valu", "vmem", "ds"):
            if p.wr & (c.rd | c.wr):
                n = max(n, tab[3])
            if c.kind == "valu" and set(p.mC) & c.wr:
                n = max(n, tab[4])
    elif p.kind == "vmem" and p.wide_store:
        if p.sdata & c.wr:
            n = max(n, 2 if c.kind == "valu" else 1)
    elif p.kind == "salu":
        if ("s", 124) in p.wr and c.kind == "vmem" and c.lds_dma:
            n = max(n, 1)
    return n


def pad_hazards(code, log):
    out = []
    total = 0
    for c in code:
        if c.kind not in ("label",):
            dist, short = 0, 0
            for k in range(len(out) - 1, -1, -1):
                p = out[k]
                if dist >= 12:
                    break
                r = required(p, c)
                d = dist
                if r > d and p.kind == "mfma" and p.passes == 8:
                    d, nm = 0, 0
                    for y in out[k + 1:]:
                        d += y.states()
                        if y.kind == "mfma" and y.passes == 8:
                            nm += 1
                            d = max(d, 8*(nm - 1))
                if r > d and r - d > short:
                    short, why = r - d, p
                dist += p.states()
            if short:
                log.append(f"nop {short}: {why.text}  ->  {c.text}")
                out.append(I(f"s_nop {short - 1}"))
                total += short
        out.append(c)
    return out, total


_SIZES = {}

def sizes(texts):
    import subprocess
    new = sorted({t for t in texts if t not in _SIZES})
    if new:
        src = "\n".join(re.sub(r"L_\w+", "0", t) for t in new) + "\n"
        r = subprocess.run(["llvm-mc", "-triple=amdgcn-amd-amdhsa", "-mcpu=gfx950", "-show-encoding"],
                           input=src, capture_output=True, text=True)
        enc = re.findall(r"encoding: \[(.*?)\]", r.stdout)
        assert len(enc) == len(new), r.stderr[:2000]
        for t, e in zip(new, enc):
            _SIZES[t] = e.count(",") + 1
    return [_SIZES[t] for t in texts]


def wide(ins):
    if ins.text == "s_nop 0":
        return "v_nop_e64"
    if ins.kind == "valu" and not ins.mn.startswith(("v_readfirstlane", "v_fmac")):
        return ins.mn + "_e64" + ins.text[len(ins.mn):]
    return None


def align(code, log, par=0, nopcost=4):
    real = [c for c in code if c.kind != "label"]
    sz = dict(zip((id(c) for c in real), sizes([c.text for c in real])))
    INF = 1 << 30
    best = [INF, INF]
    best[par] = 0
    back = []
    for c in code:
        nb, ch = [INF, INF], [None, None]
        for p in (0, 1):
            if best[p] >= INF:
                continue
            if c.kind == "label":
                opts = [(p, 0, "k")]
            else:
                w = 1 if c.cost <= 4 else 0.25
                if sz[id(c)] == 8:
                    opts = [(p, w*p, "k"), (1 - p, nopcost + w*(1 - p), "n")]
                else:
                    opts = [(1 - p, 0, "k")]
                    if wide(c):
                        opts.append((p, 0.01 + w*p, "w"))
            for q, cost, a in opts:
                if best[p] + cost < nb[q]:
                    nb[q], ch[q] = best[p] + cost, (p, a)
        best = nb
        back.append(ch)
    q = 0 if best[0] <= best[1] else 1
    left = best[q]
    acts = []
    for ch in reversed(back):
        p, a = ch[q]
        acts.append(a)
        q = p
    out, nw, nn = [], 0, 0
    for c, a in zip(code, reversed(acts)):
        if a == "n":
            out.append(I("s_nop 0"))
            nn += 1
        if a == "w":
            c = I(wide(c))
            nw += 1
        out.append(c)
    log.append(f"align: {nw} widened, {nn} nops, residual cost {left:.0f}")
    return out


def merge_waits(code):
    out = []
    for c in code:
        if out and c.text.startswith("s_waitcnt") and out[-1].text.startswith("s_waitcnt"):
            f = {}
            for k, v in re.findall(r"(\w+)\((\d+)\)", out[-1].text + " " + c.text):
                f[k] = min(int(v), f.get(k, 99))
            out[-1] = I("s_waitcnt " + " ".join(f"{k}({v})" for k, v in f.items()))
        else:
            out.append(c)
    return out


def finalize(seq, log, merge=False):
    code = flat(seq)
    code, auto = resolve_waits(code, log)
    if merge:
        code = merge_waits(code)
    code, nops = pad_hazards(code, log)
    return code, auto, nops
```

```python
import math, struct, sys
sys.path.insert(0, "gen")
from fw import *

KNAME = "recurrent_scan__sliding_block__glu_gated_swiglu__prompt_kernel"
REF = "recurrent_scan__sliding_block__glu_gated_swiglu__prompt.s.ref"

def f32(x):
    return "0x%08x" % struct.unpack("<I", struct.pack("<f", x))[0]

LOG2E = math.log2(math.e)
QKV, HB, OB, PROF, OOB = 0x10000, 0x600000, 0xE00000, 0x1800000, 0x10000000
QP, HP, OP = 86016, 114688, 32768
BIG, WREG = 49152, 28672
VBASE = 24576
SPIN = 1 << 16
W2ROW = 128*896

X, WQ, W1, W3, W2, WS = "s[4:7]", "s[8:11]", "s[12:15]", "s[16:19]", "s[20:23]", "s[24:27]"
WO, OUT = "s[12:15]", "s[16:19]"
DBG = "s[32:33]"
MASK0, TABA, TABB = 34, 66, 73
sWB, sH, sKV, sFlag, sW2, sKT, sVT = "s80", "s81", "s82", "s83", "s84", 85, 88
NEEDKV, MASKA, MASKB = "s[90:91]", "s[92:93]", "s[94:95]"
sNQ, sHL, sOst, sW4k, sRT, sCT, sL = "s96", "s97", "s98", "s99", "s100", "s101", "s0"
sOL, sXO, sNO, sWO = "s66", "s67", "s68", "s75"
tRB, tC, tROT, tW, tI, tJ, tTOK, tP0, tA, tB = ["s%d" % k for k in range(52, 62)]

vL16 = "v1"
ADG, ADG2, ADK, VOG, VOK, ADW, VOW, ADX = 2, 24, 6, 8, 12, 14, 16, 18
QRING, QP0, QP1 = (6, 7, 2), (3, 4, 5), (8, 9, 10)
vRR, vNM = "v18", "v19"
vPA, vPB = "v22", "v23"
SUM, SQ, XOF, CLR = 24, 28, 24, 248
vFO, vOne = "v30", "v31"
XB = 32
ACCA, ACCB, TMP = (144, 160, 176, 192), (144, 160, 176, 208), 224
ABUF, ST = 64, 224
KVO = 8
ONE0, KRD, VRD, HOF = 8, 12, 6, 18
QF, EM, NEGB = 192, 200, 208
PSLOT = (2048, 16384, 18432, 32768, 34816, 0)
ONES = "a[248:249]"
MF = "v_mfma_f32_32x32x16_bf16"
M4 = "v_mfma_f32_4x4x4_16b_bf16"

def vr(b, n=4): return f"v[{b}:{b+n-1}]"
def ar(b, n=4): return f"a[{b}:{b+n-1}]"

def weave(main, extra, every, start=0):
    out, extra = [], list(extra)
    for k, x in enumerate(main):
        out.append(x)
        if extra and k >= start and (k - start) % every == 0:
            out.append(extra.pop(0))
    return out + extra


def atomize(items):
    out = []
    for x in L(items):
        if x.kind == "salu" and x.mn.startswith(("s_cselect", "s_subb", "s_addc")):
            run = [x]
            while True:
                y = out.pop()
                ys = y.items if isinstance(y, Group) else [y]
                run = ys + run
                if ys[0].mn.startswith(("s_cmp", "s_bitcmp", "s_sub_u32")):
                    break
            out.append(Group(run))
        else:
            out.append(x)
    return out

KREG = {0: 208, 8: 216, 1: 80, 2: 88, 3: 64, 4: 72, 5: 96, 6: 104, 7: 240}
BACC, SACC = (208, 224, 64, 80), (0, 16, 32, 48)
HPA, HPB = 224, 72
PRE = list(range(8, 20)) + list(range(8))
def slabreg(m):
    if m < 8:
        return 8*m
    if m < 20:
        return 112 + 8*(m - 8)
    return (96, 104, 240, 248)[m - 20] if m < 24 else 112 + 8*(m - 24)
def slabrow(m):
    return 128*m if m < 14 else 128*(m - 14) + 64
def slabpos(m):
    return m - 20 if m < 34 else m - 34
WOROWS = [8*((7*hh) >> 1) + 16*m for hh in range(4) for m in range(2)]


class Gen:
    def __init__(self, stop=None, prof=False, exp=()):
        self.stop, self.prof, self.exp = stop, prof, exp
        self.par = {k: int(v) for k, v in (e.split('=') for e in exp if '=' in e and not e.startswith('o='))}
        self.slow = []
        self.lz = next((tuple(int(v) for v in e.split(":")[1:]) for e in exp if e.startswith("lz:")), None)
        self.lazy_open = False
        self.oflag = next((" " + e[2:].replace("+", " ") for e in exp if e.startswith("o=")), "")
        self.nstamp = 0
        self.log = []
        self.names = []

    def lazy(self, name):
        o = [f"v_writelane_b32 v21, s2, {self.nstamp-1}"] if self.lazy_open else []
        self.lazy_open = name is not None
        if name is not None:
            self.nstamp += 1
            self.names.append(name)
            o += [I("s_memtime s[2:3]", opt=True)]
        return o

    def stamp(self, name=""):
        if not self.prof or (self.lz and name != "end"):
            return []
        k = self.nstamp
        self.nstamp += 1
        self.names.append(name)
        return [Group(["s_memtime s[2:3]", WAIT(lg=0), f"v_writelane_b32 v21, s2, {k}"])]

    def fine(self, name, early=False):
        if "fine" not in self.exp:
            return []
        k = self.nstamp
        self.nstamp += 1
        self.names.append(name)
        self.finelist.append([f"v_accvgpr_read_b32 v20, a{160+k}", "s_nop 0", "v_readfirstlane_b32 s2, v20", "s_nop 3", f"v_writelane_b32 v21, s2, {k}"])
        return L(["s_memtime vcc", WAIT(lg=0), f"v_accvgpr_write_b32 a{160+k}, vcc_lo"])

    def check(self, name, load, cmpseq):
        self.slow += [f"L_slow_{name}:", f"s_mov_b32 s3, {SPIN}", f"L_spin_{name}:", load, "s_waitcnt vmcnt(0)"] + cmpseq + [
            f"s_cbranch_scc0 L_back_{name}", "s_sub_u32 s3, s3, 1", "s_cmp_lg_u32 s3, 0",
            f"s_cbranch_scc1 L_spin_{name}", f"s_branch L_back_{name}"]
        return Group(cmpseq + [f"s_cbranch_scc1 L_slow_{name}", f"L_back_{name}:"])

    def publish(self, event, tags):
        return [Group([WAIT(vm=tags), I(f"buffer_store_dword {vOne}, {vFO}, {WS}, {sFlag} offen offset:{64*event} sc1")])]

    def entry(self):
        o = ["s_cmp_ge_u32 s2, 256", "s_cbranch_scc1 L_exit",
             "s_load_dwordx2 s[4:5], s[0:1], 0", "s_load_dwordx16 s[36:51], s[0:1], 8",
             "s_load_dwordx2 s[24:25], s[0:1], 72"] + (["s_memtime s[64:65]", "s_memrealtime s[34:35]"] if self.prof else []) + [
             "v_lshrrev_b32 v2, 6, v0", "v_and_b32 v0, 63, v0",
             f"s_and_b32 {tJ}, s2, 7", f"v_readfirstlane_b32 {tW}, v2", f"s_lshr_b32 {tI}, s2, 3"] + self.codepf() + [
             f"s_lshr_b32 {tB}, {tJ}, 1", f"s_mul_i32 {tA}, {tB}, 28", f"s_sub_u32 {tA}, {tA}, 4",
             f"s_lshl_b32 {tB}, {tB}, 2", f"s_add_u32 {tC}, {tB}, 112", f"s_cmp_lt_u32 {tI}, 4", f"s_cselect_b32 {tA}, {tC}, {tA}",
             f"s_add_u32 {tA}, {tA}, {tI}", f"s_lshr_b32 {tC}, {tA}, 3", f"s_and_b32 {tA}, {tA}, 7",
             f"s_and_b32 {tJ}, {tJ}, 1", f"s_lshl_b32 {tRB}, {tJ}, 3", f"s_add_u32 {tRB}, {tRB}, {tA}",
             f"s_lshl_b32 {sRT}, {tJ}, 4", f"s_add_u32 {sRT}, {sRT}, {tB}",
             f"s_lshl_b32 {tB}, {tC}, 1", f"s_add_u32 {tROT}, {tA}, {tB}", f"s_mul_i32 {tA}, {tROT}, 37", f"s_lshr_b32 {tA}, {tA}, 8",
             f"s_mul_i32 {tA}, {tA}, 7", f"s_sub_u32 {tROT}, {tROT}, {tA}"]
        if "norot" in self.exp:
            o += [f"s_mov_b32 {tROT}, 0"]
        o += [f"s_lshl_b32 {tTOK}, {tRB}, 2", f"s_add_u32 {tTOK}, {tTOK}, {tW}",
              f"s_mul_i32 {sWB}, {tW}, {WREG}", f"s_add_u32 {sWB}, {sWB}, {BIG}",
              f"s_lshl_b32 {sW4k}, {tW}, 12",
              "s_mov_b32 s6, 1835008", "s_mov_b32 s7, 0x20000", f"s_mov_b32 s26, {OOB}", "s_mov_b32 s27, 0x20000"]
        o += ["v_lshrrev_b32 v2, 3, v0", "v_and_b32 v3, 7, v0", "v_lshrrev_b32 v4, 4, v0", "v_xor_b32 v4, v3, v4",
              "v_mul_u32_u24 v5, 896, v2", "v_lshl_add_u32 v24, v4, 4, v5", "v_xor_b32 v25, 64, v24",
              "v_add_u32 v25, 6144, v25", "v_add_u32 v26, 12288, v24", "v_add_u32 v27, 12288, v25",
              f"v_lshlrev_b32 {vL16}, 4, v0",
              f"s_mul_i32 s30, {tTOK}, 28672", f"s_lshl_b32 s28, {tROT}, 7", "s_add_u32 s28, s28, s30",
              "s_add_u32 s29, s30, 896", f"s_mov_b32 m0, {sWB}",
              f"s_cmp_ge_u32 {tC}, 14", "s_cbranch_scc1 L_Q"]
        return L(o)

    def codepf(self):
        if "pf" not in self.exp:
            return []
        return ["s_getpc_b64 s[60:61]", "L_pc:", f"s_and_b32 s62, {tI}, 3", f"s_lshl_b32 s62, s62, 2", f"s_add_u32 s62, s62, {tW}",
                "s_lshl_b32 s62, s62, 11", f"s_cmp_lt_u32 {tI}, 4", "s_cselect_b32 s63, L_Q-L_pc, 0", "s_add_u32 s62, s62, s63",
                "v_and_b32 v250, 15, v0", "v_lshl_add_u32 v250, v250, 7, s62", "v_min_u32 v250, L_exit-L_pc, v250",
                "v_mov_b32 v251, s61", "v_add_co_u32 v250, vcc, s60, v250", "s_nop 1", "v_addc_co_u32 v251, vcc, 0, v251, vcc",
                "global_load_dword v253, v[250:251], off"]

    def xdma(self, n):
        pre = []
        if n:
            pre = [f"s_add_u32 m0, {sWB}, {4096*n}", "s_add_u32 s28, s28, 128", "s_cmp_eq_u32 s28, s29", "s_cselect_b32 s28, s30, s28"]
        return L(pre) + [I(f"buffer_load_dwordx4 v{XOF+i}, {X}, s28 offen offset:{1024*i} lds", tag=f"x{n}" if i == 3 else None) for i in range(4)]

    def stages(self, q):
        st = {}
        def dma(name, loc, items, post):
            m0 = f"s_add_u32 m0, {sW4k}, {16384*loc[1]}" if loc[0] == "ring" else f"s_add_u32 m0, {sWB}, {4096*loc[1]}"
            o = [I(m0)]
            for k, (srd, vo, so, off) in enumerate(items):
                o.append(I(f"buffer_load_dwordx4 v{vo}, {srd}, {so} offen offset:{off} lds", tag=name if k == len(items) - 1 else None))
            st[name] = o + L(post)
        if not q:
            for s in range(4):
                it = [(WQ, VOK, f"s{TABB+2*s}", 0), (WQ, VOK+1, f"s{TABB+2*s}", 1024)]
                if s < 3:
                    it += [(WQ, VOK, f"s{TABB+2*s+1}", 2048), (WQ, VOK+1, f"s{TABB+2*s+1}", 3072)]
                dma(f"K{s}", ("ring", s % 3), it, [])
            for blk in "AB":
                for n in range(7):
                    t = f"s{TABA+n}"
                    dma(f"{blk}{n}", ("part", n), [(W1, VOG, t, 0), (W1, VOG+1, t, 1024), (W3, VOG+2, t, 2048), (W3, VOG+3, t, 3072)],
                        [f"s_add_u32 {t}, {t}, 128"] if blk == "A" else [])
        else:
            for blk in "AB":
                for n in range(7):
                    a, b = f"s{TABA+n}", f"s{TABB+n}"
                    post = [f"s_add_u32 {a}, {a}, s12", f"s_add_u32 {b}, {b}, s13"] if blk == "A" else []
                    dma(f"{blk}{n}", self.qloc(blk, n), [(WQ, VOK, a, 0), (WQ, VOK+1, a, 1024), (WQ, VOK, b, 2048), (WQ, VOK+1, b, 3072)], post)
        return st

    @staticmethod
    def qloc(blk, n):
        if blk == "A":
            return ("ring", n) if n < 3 else ("part", n - 3)
        return ("part", 4 + n) if n < 3 else (("ring", n - 3) if n < 6 else ("part", 0))

    def steps(self, q):
        S = []
        if not q:
            for n in range(7):
                for kp in range(2):
                    S.append([(ar(16*tt, 16), n+kp+b == 0, 4*n+2*kp+b, ADK+tt, 16384*((n >> 1) % 3) + (2*kp+b)*4096 + (n & 1)*2048)
                              for b in range(2) for tt in range(2)])
            for acc in (ACCA, ACCB):
                fr = lambda t, n, ks: (vr(acc[t], 16), n+ks == 0, 4*n+ks, (ADG if ks < 2 else ADG2)+t, (ks & 1)*WREG + 4096*n)
                for n in range(3):
                    for ks in range(4):
                        S.append([fr(t, n, ks) for t in range(4)])
                for t in range(4):
                    for n in range(3, 7):
                        S.append([fr(t, n, ks) for ks in range(4)])
        else:
            def fr(blk, t, n, ks):
                kind, p = self.qloc(blk, n)
                r = (t & 1) if blk == "A" else t
                if kind == "ring":
                    ad, off = QRING[r], 16384*p + 4096*ks
                else:
                    ad, off = (QP0 if ks < 2 else QP1)[r], (ks & 1)*WREG + 4096*p
                acc = ar(16*t, 16) if blk == "A" else vr(ACCB[t], 16)
                return (acc, n+ks == 0, 4*n+ks, ad, off + (t >> 1)*2048)
            for n in range(7):
                for ks in range(4):
                    S.append([fr("A", t, n, ks) for t in range(4)])
            for n in range(3):
                for ks in range(4):
                    S.append([fr("B", t, n, ks) for t in range(3)])
            for t in range(3):
                for n in range(3, 7):
                    S.append([fr("B", t, n, ks) for ks in range(4)])
        return S

    def step_reads(self, S, G):
        o = []
        for f, (_, _, _, ad, off) in enumerate(S[G]):
            for mm in range(2):
                b = ABUF + 16*(G % 3) + 4*f + 2*mm
                o.append(I(f"ds_read_b64_tr_b16 {ar(b, 2)}, v{ad} offset:{off+512*mm}"))
        o[-1].tag = f"R{G}"
        return o

    def center(self, j):
        s = XB + 8*j
        o = [f"v_fma_f32 v{s+e}, v{s+e}, {vRR}, {vNM}" for e in range(8)]
        o += [f"v_cvt_pk_bf16_f32 v{XB+4*j+k}, v{s+2*k}, v{s+2*k+1}" for k in range(4)]
        return o

    def unpack(self, j):
        s = XB + 8*j
        o = []
        for k in range(4):
            o += [f"v_lshlrev_b32 v{s+2*k}, 16, v{s+4+k}", f"v_and_b32 v{s+2*k+1}, 0xffff0000, v{s+4+k}"]
        o[6], o[7] = f"v_lshlrev_b32 v{s+6}, 16, v{s+7}", f"v_and_b32 v{s+7}, 0xffff0000, v{s+7}"
        return o

    def prologue(self, q, st, S):
        o = ["L_Q:"] if q else []
        P = self.par
        s = [f"v_lshl_add_u32 v5, {tW}, 4, v2", "v_bfe_u32 v4, v0, 4, 1", "v_lshlrev_b32 v7, 4, v3",
             "v_lshlrev_b32 v6, 6, v4", "v_xor_b32 v6, v6, v7",
             f"v_mul_u32_u24 v{VOK}, 2688, v5", f"v_add_u32 v{VOK}, v{VOK}, v6", f"v_add_u32 v{VOK+1}, {8*2688-1024}, v{VOK}"]
        if not q:
            s += [f"v_mul_u32_u24 v{VOW}, 896, v2", f"v_add_u32 v{VOW}, v{VOW}, v6", f"v_add_u32 v{VOW+1}, 6144, v{VOW}",
                  "v_lshlrev_b32 v6, 5, v4", "v_xor_b32 v6, v6, v7",
                  f"v_mul_u32_u24 v{VOG}, 3584, v5", f"v_add_u32 v{VOG}, v{VOG}, v6",
                  f"v_add_u32 v{VOG+1}, {8*3584-1024}, v{VOG}", f"v_xor_b32 v{VOG+2}, 64, v{VOG}", f"v_xor_b32 v{VOG+3}, 64, v{VOG+1}"]
        else:
            s = [f"v_mov_b32 v{CLR+k}, 0" for k in range(4)] + s
        early, late = self.setup(q)
        srds = ["s_sub_u32 s8, s36, 2048", "s_subb_u32 s9, s37, 0", f"s_mov_b32 s10, {448*2688+2048}", "s_mov_b32 s11, 0x20000"]
        if not q:
            srds += ["s_mov_b32 s12, s42", "s_mov_b32 s13, s43", f"s_mov_b32 s14, {448*3584}", "s_mov_b32 s15, 0x20000",
                     "s_sub_u32 s16, s44, 2048", "s_subb_u32 s17, s45, 0", f"s_mov_b32 s18, {448*3584+2048}", "s_mov_b32 s19, 0x20000"]
        s = atomize(s + early)
        ne = min(P.get("ne", 40), len(s))
        o += s[:ne] + [WAIT(lg=0)] + self.fine("karg")
        s = s[ne:] + atomize(srds + late)
        if q:
            o += ["s_cmp_lg_u32 s2, 0", "s_cbranch_scc1 L_noclear"]
            o += [I(f"buffer_store_dwordx4 {vr(CLR)}, {vL16}, {WS}, {sW4k} offen offset:{1024*k} sc1", opt=True) for k in range(4)]
            o += ["L_noclear:"]
        def units(x):
            u = []
            for y in x:
                u += [[y]] if y.kind == "vmem" else []
                u[-1] += [] if y.kind == "vmem" else [y]
            return [Group(y) for y in u]
        w = self.prow = ("K0", "K1", "K2", "A0", "A1")[:4 + P.get("a1", 0)] if not q else ("A0", "A1", "A2", "A3")
        dm = units(sum((self.xdma(n) for n in range(7)), []) + sum((st[k] for k in w), []))
        pace, keep = P.get("pace", 15), P.get("keep", 21)
        n0 = P.get("burst", 2)
        o += dm[:n0]
        nset = min((len(s) - keep)//pace, 28 - n0)
        o += weave(s[:len(s)-keep], dm[n0:n0+nset], pace, pace - 1)
        dm = dm[n0+nset:]
        spare = s[len(s)-keep:]
        o += self.fine("setup")
        x = []
        fg = lambda nm: [Group(self.fine(nm))] if 'fine' in self.exp else []
        for n in range(7):
            x += [WAIT(vm=f"x{n}")] + fg(f"x{n}")
            x += [I(f"ds_read_b128 {vr(XB+8*j+4)}, v{ADX+j-4*n} offset:{4096*n}", tag=f"xr{j}") for j in range(4*n, 4*n+4)]
            if n == 0 and q:
                x += [Group(["s_cmp_lg_u32 s2, 0", "s_cbranch_scc1 L_nodbg", f"s_lshr_b32 s3, {sW4k}, 10", "v_mov_b32 v254, s3", "v_mov_b32 v255, 1",
                             I(f"global_store_dword v254, v255, {DBG} sc1", opt=True), "L_nodbg:"])]
            u = sum((self.unpack(j) for j in range(4*n-4, 4*n)), []) if n else spare
            x += u[:10]
            u = u[10:]
            for ks in range(4):
                j = 4*n + ks
                r = XB + 8*j + 4
                for hh in range(2):
                    cs = "0" if j+hh == 0 else ar(0)
                    cq = "0" if j+hh == 0 else vr(SQ)
                    x += [WAIT(lg=f"xr{j}")]*(1 - hh)
                    x += [f"{M4} {ar(0)}, {ONES}, {vr(r+2*hh, 2)}, {cs}", f"{M4} {vr(SQ)}, {vr(r+2*hh, 2)}, {vr(r+2*hh, 2)}, {cq}"]
                    k = -(-len(u)//(8 - 2*ks - hh))
                    x += u[:k]
                    u = u[k:]
        x += [WAIT(vm=w[0]), "s_barrier"] + self.step_reads(S, 0) + self.step_reads(S, 1)
        x += fg("bar")
        x += ["s_mov_b32 vcc_lo, 0xaaaaaaaa", "s_mov_b32 vcc_hi, 0xaaaaaaaa", "s_mov_b32 s2, 0xcccccccc", "s_mov_b32 s3, 0xcccccccc"]
        fill = sum((self.unpack(j) for j in range(24, 28)), [])
        take = lambda k: [fill.pop(0) for _ in range(min(k, len(fill)))]
        SM = SUM
        x += [f"v_cndmask_b32 v{SQ}, v{SQ}, v{SQ+1}, vcc", f"v_cndmask_b32 v{SQ+2}, v{SQ+2}, v{SQ+3}, vcc",
              f"v_accvgpr_read_b32 v{SM}, a0", f"v_accvgpr_read_b32 v{SM+1}, a0", f"v_cndmask_b32 v{SQ}, v{SQ}, v{SQ+2}, s[2:3]"] + take(1)
        x += [f"v_mov_b32 v{SQ+1}, v{SQ}", f"v_permlane32_swap_b32 v{SM}, v{SM+1}"] + take(1)
        x += [f"v_permlane32_swap_b32 v{SQ}, v{SQ+1}", f"v_add_f32 v{SM}, v{SM}, v{SM+1}", f"v_add_f32 v{SQ}, v{SQ}, v{SQ+1}",
              f"v_mul_f32 v{SM}, {f32(-1/448)}, v{SM}", f"v_mul_f32 v{SQ}, {f32(1/448)}, v{SQ}",
              f"v_fma_f32 v{SQ}, -v{SM}, v{SM}, v{SQ}", f"v_max_f32 v{SQ}, 0, v{SQ}",
              f"v_add_f32 v{SQ}, {f32(1e-5)}, v{SQ}", f"v_rsq_f32 v{SQ}, v{SQ}"] + take(1)
        x += [f"v_mul_f32 {vRR}, {f32(LOG2E)}, v{SQ}", f"v_mul_f32 {vNM}, v{SM}, {vRR}"]
        x += self.center(0) + self.center(1)
        self.fill = fill
        x = L(x)
        ev = min(P.get("pace2", 16), (len(x) - 8)//len(dm))
        self.log.append(f"prologue {'Q' if q else 'G'}: setup {ne}+{len(s)}, {n0+nset} early DMAs, {len(dm)} woven every {ev} of {len(x)}")
        o += weave(x, dm, ev, 5)
        if self.prof:
            o += ["v_writelane_b32 v21, s64, 63", "v_writelane_b32 v21, s34, 62"]
        return L(o)

    def setup(self, q):
        e = []
        e += [f"s_mov_b32 s1, {tROT}"]
        if not q:
            e += [f"s_lshl_b32 {tP0}, {tC}, 8", f"s_lshl_b32 s62, {tC}, 7", "s_add_u32 s62, s62, 896"]
        else:
            e += [f"s_cmp_eq_u32 {tC}, 14", f"s_cselect_b32 {tP0}, 0, 640", f"s_add_u32 s62, {tP0}, 128", f"s_add_u32 {tP0}, {tP0}, 2048",
                  f"s_cmp_eq_u32 {tC}, 14", "s_cselect_b32 s12, 384, 0", "s_cselect_b32 s13, 640, 0", "s_sub_u32 s12, s12, 128", "s_sub_u32 s13, s13, 384"]
        for n in range(7):
            if not q:
                e += [f"s_mul_i32 s{TABA+n}, s1, {64*3584}", f"s_add_u32 s{TABA+n}, s{TABA+n}, {tP0}",
                      f"s_mul_i32 s{TABB+n}, s1, {64*2688}", f"s_add_u32 s{TABB+n}, s{TABB+n}, s62"]
                if n % 2 == 0:
                    e += [f"s_add_u32 s{TABB+n}, s{TABB+n}, 2048"]
            else:
                e += [f"s_mul_i32 s{TABB+n}, s1, {64*2688}", f"s_add_u32 s{TABA+n}, s{TABB+n}, {tP0}",
                      f"s_add_u32 s{TABB+n}, s{TABB+n}, s62"]
            if n < 6:
                e += ["s_add_u32 s1, s1, 1", "s_cmp_eq_u32 s1, 7", "s_cselect_b32 s1, 0, s1"]
        e += ["v_lshrrev_b32 v240, 5, v0", "v_bfe_u32 v241, v0, 4, 1", "v_bfe_u32 v242, v0, 2, 2", "v_and_b32 v243, 3, v0",
              "v_and_b32 v244, 31, v0", "v_bfe_u32 v245, v0, 3, 1",
              "v_lshlrev_b32 v246, 7, v242", "v_lshl_add_u32 v246, v243, 3, v246",
              "v_lshl_add_u32 v247, v245, 1, v241", "v_lshl_add_u32 v247, v247, 5, v246",
              f"v_lshl_add_u32 v{ADK}, v240, 10, v247", f"v_xor_b32 v{ADK+1}, 64, v{ADK}",
              ]
        if not q:
            e += [f"v_lshl_add_u32 v{ADW}, v240, 9, v247", f"v_add_u32 v{ADW}, {sWB}, v{ADW}",
                  f"s_lshr_b32 {tA}, {tW}, 1", f"s_lshl_b32 {tA}, {tA}, 6", f"v_xor_b32 v{ADW}, {tA}, v{ADW}", f"v_xor_b32 v{ADW+1}, 64, v{ADW}",
                  "v_lshl_add_u32 v247, v241, 1, v245", "v_lshl_add_u32 v247, v247, 5, v246", "v_lshl_add_u32 v247, v240, 10, v247",
                  "v_lshl_add_u32 v247, v241, 11, v247", f"v_add_u32 v{ADG}, {BIG}, v247"] + [f"v_xor_b32 v{ADG+t}, {32*t}, v{ADG}" for t in (1, 2, 3)]
        else:
            e += [f"s_and_b32 {tA}, {tC}, 1", f"s_lshl_b32 {tA}, {tA}, 6", f"v_xor_b32 v{QRING[2]}, {tA}, v{ADK}"]
            e += [f"v_add_u32 v{QP0[r]}, {BIG}, v{QRING[r]}" for r in range(3)]
            e += [f"v_add_u32 v{QP1[r]}, {BIG+2*WREG}, v{QRING[r]}" for r in range(3)]
        e += ["v_bfe_u32 v247, v0, 1, 3", "v_xor_b32 v247, v247, v240", "v_lshlrev_b32 v247, 4, v247",
              f"v_lshl_add_u32 v{ADX}, v244, 7, v247", f"v_add_u32 v{ADX}, {sWB}, v{ADX}"]
        e += [f"v_xor_b32 v{ADX+k}, {32*k}, v{ADX}" for k in (1, 2, 3)]
        e += ["v_mov_b32 v247, 0x3f803f80", "v_accvgpr_write_b32 a248, v247", "v_accvgpr_write_b32 a249, v247"]
        o = []
        o += ["s_mov_b32 s32, s50", "s_mov_b32 s33, s51"]
        if not q:
            o += ["s_mov_b32 s20, s46", "s_mov_b32 s21, s47", f"s_mov_b32 s22, {1792*896}", "s_mov_b32 s23, 0x20000",
                  f"s_mov_b32 {sL}, {f32(LOG2E)}",
                  f"s_and_b32 {tA}, {tI}, 3", f"s_add_u32 {sRT}, {sRT}, {tA}", f"s_lshr_b32 {sCT}, {tI}, 2", f"s_sub_u32 {sCT}, {sCT}, 1",
                  f"s_mul_i32 {sH}, {tTOK}, {HP}", f"s_lshl_b32 {tA}, {tC}, 13", f"s_add_u32 {sH}, {sH}, {tA}", f"s_add_u32 {sH}, {sH}, {HB}",
                  f"s_mul_i32 {sW2}, {tW}, {16*896}", f"s_lshl_b32 {tA}, {sCT}, 7", f"s_add_u32 {sW2}, {sW2}, {tA}",
                  f"s_mul_i32 {sHL}, {sRT}, {2*HP}", f"s_lshl_b32 {tA}, {tW}, 10", f"s_add_u32 {sHL}, {sHL}, {tA}", f"s_add_u32 {sHL}, {sHL}, {HB}"]
        o += [
              f"s_mul_i32 {tP0}, {tC}, 7", f"s_lshr_b32 {tP0}, {tP0}, 1",
              f"s_mul_i32 {tB}, {tTOK}, {QP}", f"s_add_u32 {tB}, {tB}, {QKV}"]
        if not q:
            o += [f"s_lshl_b32 {tA}, {tC}, 12", f"s_add_u32 {sKV}, {tB}, {tA}", f"s_add_u32 {sKV}, {sKV}, {56*512}"]
        else:
            o += [f"s_cmp_eq_u32 {tC}, 14", f"s_cselect_b32 {tA}, 0, {40*512}", f"s_add_u32 {sKV}, {tB}, {tA}",
                  f"s_cmp_eq_u32 {tC}, 14", f"s_cselect_b32 {tA}, 16, 32", f"s_lshl_b32 {tA}, {tA}, 9", f"s_add_u32 s14, {tB}, {tA}",
                  f"s_cmp_eq_u32 {tC}, 14", f"s_cselect_b32 {tA}, 24, 28", f"s_lshl_b32 {tA}, {tA}, 9", f"s_add_u32 s15, {tB}, {tA}"]
        if "nost" in self.exp:
            o += [f"s_mov_b32 {sH}, {OOB}", f"s_mov_b32 {sKV}, {OOB}"]
        o += [f"s_lshl_b32 {sFlag}, {tTOK}, 8", f"s_lshl_b32 {tA}, {tC}, 2", f"s_add_u32 {sFlag}, {sFlag}, {tA}",
              f"s_lshl_b32 {tA}, {tP0}, 9", f"s_add_u32 {tA}, {tA}, {56*512}",
              f"s_add_u32 s{sKT+2}, {tB}, {tA}", f"s_add_u32 {tA}, {tA}, {QKV}"]
        for pp in (0, 1):
            o += [f"s_sub_u32 s{sKT+pp}, s{sKT+2}, {(2-pp)*4*QP}", f"s_add_u32 s{sVT+pp}, s{sKT+pp}, {56*512}",
                  f"s_cmp_ge_u32 {tRB}, {2-pp}", f"s_cselect_b32 s{sKT+pp}, s{sKT+pp}, {tA}", f"s_cselect_b32 s{sVT+pp}, s{sVT+pp}, {OOB}"]
        o += [f"s_lshr_b32 {tA}, {tP0}, 3", f"s_lshl_b32 s91, 0x81, {tA}", f"s_add_u32 {tA}, {tP0}, 3", f"s_lshr_b32 {tA}, {tA}, 3",
              f"s_lshl_b32 {tA}, 0x81, {tA}", f"s_or_b32 s91, s91, {tA}", "s_mul_i32 s90, s91, 0x10001",
              f"s_cmp_ge_u32 {tC}, 8", f"s_cselect_b32 {sNQ}, 2, 1",
              f"s_lshl_b32 {sNQ}, {sNQ}, 14",
              f"s_bitcmp1_b32 {tC}, 0", "s_cselect_b32 s92, -1, 0", "s_mov_b32 s93, 0", "s_mov_b32 s94, 0", "s_cselect_b32 s95, 0, -1",
              f"s_lshl_b32 {sOst}, {tTOK}, 15", f"s_lshl_b32 {tA}, {tC}, 11", f"s_add_u32 {sOst}, {sOst}, {tA}", f"s_add_u32 {sOst}, {sOst}, {OB}"]
        o += ["v_lshrrev_b32 v246, 4, v0", "v_min_u32 v246, 2, v246", f"s_sub_u32 {tA}, {tTOK}, 8",
              f"v_lshl_add_u32 v246, v246, 2, {tA}", "v_max_i32 v246, 0, v246", "v_and_b32 v247, 15, v0", "v_lshlrev_b32 v247, 2, v247",
              f"v_lshl_add_u32 {vPA}, v246, 8, v247"]
        if not q:
            o += [f"s_lshl_b32 {tA}, {sRT}, 9", f"s_add_u32 {tA}, {tA}, 64", "v_lshl_add_u32 v247, v241, 8, v247", "v_lshl_add_u32 v247, v240, 6, v247",
                  f"v_add_u32 {vPB}, {tA}, v247"]
        W = lambda k, v: f"v_accvgpr_write_b32 a{ST+k}, v{v}"
        o += ["v_lshlrev_b32 v238, 9, v240", "v_lshlrev_b32 v246, 2, v240", "v_xor_b32 v246, v246, v244",
              "v_lshl_add_u32 v236, v246, 4, v238", "v_xor_b32 v237, 128, v236", W(0, 236), W(1, 237)]
        for pp in (0, 1):
            o += [f"s_cmp_ge_u32 {tRB}, {2-pp}", "s_cselect_b64 vcc, -1, 0",
                  "v_cndmask_b32 v246, v238, v236, vcc", "v_cndmask_b32 v247, v238, v237, vcc", W(2+2*pp, 246), W(3+2*pp, 247)]
        o += [f"s_lshl_b32 {tA}, {tW}, 11", f"v_add_u32 v246, {tA}, v236", f"v_add_u32 v247, {tA}, v237", W(6, 246), W(7, 247),
              f"s_add_u32 {tA}, {tA}, {VBASE}",
              "v_lshrrev_b32 v246, 1, v243", "v_lshl_add_u32 v246, v241, 1, v246",
              "v_lshl_add_u32 v247, v240, 2, v242", "v_lshlrev_b32 v239, 2, v246", "v_xor_b32 v247, v247, v239",
              "v_lshlrev_b32 v247, 4, v247", "v_lshl_add_u32 v247, v246, 9, v247", "v_and_b32 v246, 1, v0", "v_lshl_add_u32 v247, v246, 3, v247",
              f"v_add_u32 v247, {tA}, v247", W(8, 247), "v_xor_b32 v247, 128, v247", W(9, 247),
              f"s_bitcmp1_b32 {tC}, 0", f"s_cselect_b32 {tB}, 0, {3*512+8}", f"s_add_u32 {tA}, {tA}, {tB}",
              f"v_lshl_add_u32 v246, v244, 4, {tA}", "v_lshl_add_u32 v247, v240, 13, v246", W(10, 247),
              "v_add_u32 v246, 16384, v246", W(11, 246),
              f"v_add_u32 v246, {tRB}, v240", "v_cmp_le_u32 vcc, 2, v246", "v_mov_b32 v247, 0x3f803f80", "s_nop 0",
              "v_cndmask_b32 v247, 0, v247, vcc", W(12, 247),
              ]
        if not q:
            o += [f"s_and_b32 {tA}, {tW}, 1", f"s_mul_i32 {tB}, {tA}, {HP}", f"v_add_u32 v246, {tB}, {vL16}", W(13, 246),
                  f"s_sub_u32 {tB}, {HP}, {tB}", f"v_add_u32 v246, {tB}, {vL16}", W(14, 246)]
        o += ["v_cmp_eq_u32 vcc, 0, v0", f"v_mov_b32 v247, {OOB}", "s_nop 0", "v_cndmask_b32 v247, v247, v0, vcc", W(15, 247),
              "v_lshlrev_b32 v246, 2, v240", "v_sub_u32 v246, v244, v246", "v_mov_b32 v238, 0xffff", "v_mov_b32 v239, 0xffff0000"]
        for d in range(8):
            k0 = 8*(d >> 1) + 2*(d & 1)
            o += [f"v_cmp_le_i32 vcc, {k0}, v246", f"v_cmp_le_i32 s[62:63], {k0+1}, v246", "s_nop 0",
                  "v_cndmask_b32 v236, 0, v238, vcc", "v_cndmask_b32 v237, 0, v239, s[62:63]", "v_or_b32 v236, v236, v237", W(16+d, 236)]
        self.ptrmove = ["s_mov_b32 s28, s38", "s_mov_b32 s29, s39", "s_mov_b32 s30, s48", "s_mov_b32 s31, s49"]
        return e, o

    def masks(self):
        o = []
        for r in range(16):
            k0 = 8*(r >> 2) + (r & 3)
            o += [f"s_mov_b32 s{MASK0+2*r}, 0x{(0xffffffff << k0) & 0xffffffff:x}",
                  f"s_mov_b32 s{MASK0+2*r+1}, 0x{(0xffffffff << (k0+4)) & 0xffffffff:x}"]
        return o

    def epi_gu(self, b, dst):
        o = []
        for half in range(2):
            g, u = b+4*half, b+8+4*half
            o += [f"v_mul_f32 v{u+e}, v{g+e}, v{u+e}" for e in range(4)]
            o += [f"v_exp_f32 v{g+e}, -v{g+e}" for e in range(4)]
            o += [f"v_fma_f32 v{g+e}, v{g+e}, {sL}, {sL}" for e in range(4)]
            o += [f"v_rcp_f32 v{g+e}, v{g+e}" for e in range(4)]
            o += [f"v_mul_f32 v{u+e}, v{g+e}, v{u+e}" for e in range(4)]
            o += [f"v_cvt_pk_bf16_f32 v{dst+2*half+k}, v{u+2*k}, v{u+2*k+1}" for k in range(2)]
        return o

    def hstore(self, src, t, tag):
        return [I(f"buffer_store_dwordx4 {vr(src)}, {vL16}, {WS}, {sH} offen offset:{1024*t} sc1", tag=tag)]

    def epi_qkv(self, src, tmp, scale):
        o = []
        base = tmp if tmp else src
        for qq in range(2):
            n = base + 8*qq
            if tmp:
                o += [f"v_accvgpr_read_b32 v{n+e}, a{src+8*qq+e}" for e in range(8)]
            if scale:
                o += [f"v_mul_f32 v{n+e}, {f32(28**-0.5/LOG2E)}, v{n+e}" for e in range(8)]
            o += [f"v_cvt_pk_bf16_f32 v{n+k}, v{n+2*k}, v{n+2*k+1}" for k in range(4)]
        for qq in range(2):
            n = base + 8*qq
            o += [f"v_permlane32_swap_b32 v{n}, v{n+2}", f"v_permlane32_swap_b32 v{n+1}, v{n+3}"]
        return o

    def qkv_store(self, base, soff, off, tag):
        return [I(f"buffer_store_dwordx4 {vr(base+8*qq)}, {vL16}, {WS}, {soff} offen offset:{off+1024*qq} sc1", tag=f"{tag}{'ab'[qq]}") for qq in range(2)]

    def slabdma(self, m, base, lds):
        srd, so, key, row = (W2, sW2, "w2", slabrow(m)) if m < 28 else (WO, sWO, "wo", WOROWS[m-28])
        adv = (row - self.rowpos[key])*896
        self.rowpos[key] = row
        return [f"s_add_u32 m0, {base}, {lds}"] + ([f"s_add_u32 {so}, {so}, {adv & 0xffffffff}"] if adv else []) + [
            I(f"buffer_load_dwordx4 v{VOW}, {srd}, {so} offen lds"),
            I(f"buffer_load_dwordx4 v{VOW+1}, {srd}, {so} offen offset:1024 lds", tag=f"sl{m}")]

    def bigslab(self, m):
        return self.slabdma(m, sWB, 2048*slabpos(m))

    def slab_reads(self, ad, lds, m):
        o = [I(f"ds_read_b64_tr_b16 {ar(slabreg(m)+4*tt+2*mm, 2)}, v{ad+tt} offset:{lds+1024*mm}") for tt in range(2) for mm in range(2)]
        o[-1].tag = f"rd{m}"
        return o

    def kvdma(self, which, pp):
        base = (0 if which == "K" else VBASE) + 8192*pp
        vo = (KVO + 2 + 2*pp if (which == "K" and pp < 2) else KVO)
        pre = [f"s_add_u32 m0, s1, {base}"]
        if which == "K":
            so = f"s{sKT+pp}"
        elif pp < 2:
            so = f"s{sVT+pp}"
        else:
            so = f"s{sVT}"
            pre += [f"s_add_u32 {so}, s{sKT+2}, {56*512}"]
        return pre + [I(f"buffer_load_dwordx4 v{vo}, {WS}, {so} offen sc1 lds", tag=f"{which}s{pp}"),
                      I(f"buffer_load_dwordx4 v{vo+1}, {WS}, {so} offen offset:1024 sc1 lds", tag=f"{which}t{pp}")]

    def kv_all(self):
        return [f"s_lshr_b32 s1, {sW4k}, 1"] + sum((self.kvdma(w_, pp) for w_ in "KV" for pp in range(3)), [])

    POLLKV = f"buffer_load_dword v28, {vPA}, {WS}, 0 offen sc1"
    CMPKV = ["v_cmp_eq_u32 vcc, 1, v28", f"s_andn2_b64 vcc, {NEEDKV}, vcc"]
    CMPQ = ["v_cmp_eq_u32 vcc, 1, v28", f"s_andn2_b32 vcc_lo, {sNQ}, vcc_hi"]
    POLLH = f"buffer_load_dword v29, {vPB}, {WS}, 0 offen sc1"
    CMPHA = ["v_cmp_eq_u32 vcc, 1, v29", "s_andn2_b32 vcc_lo, 0x3fff3fff, vcc_lo"]
    CMPHB = ["v_cmp_eq_u32 vcc, 1, v29", "s_andn2_b32 vcc_lo, 0x3fff3fff, vcc_hi"]

    def rest(self, v, k, n=1):
        return [f"v_accvgpr_read_b32 v{v+i}, a{ST+k+i}" for i in range(n)]

    def qload(self):
        return [f"s_sub_u32 s1, s{sKT+2}, {56*512}"] + [
            I(f"buffer_load_dwordx4 {vr(QF+4*ks)}, {vL16}, {WS}, s1 offen offset:{1024*ks} sc1", tag=f"ql{ks}") for ks in range(2)]

    def qmask(self):
        return [WAIT(vm="ql1"), f"v_cndmask_b32 v{QF}, v{QF}, 0, {MASKA}", f"v_cndmask_b32 v{QF+1}, v{QF+1}, 0, {MASKA}",
                f"v_cndmask_b32 v{QF+6}, v{QF+6}, 0, {MASKB}", f"v_cndmask_b32 v{QF+7}, v{QF+7}, 0, {MASKB}"]

    def ones(self):
        return [WAIT(vm="Vt2"), f"ds_write_b32 v{ONE0}, v{ONE0+2}", I(f"ds_write_b32 v{ONE0+1}, v{ONE0+3}", tag="ones")]

    def att_restore(self):
        return self.rest(ONE0, 10, 3) + [f"v_mov_b32 v{ONE0+3}, 0x3f803f80"] + self.rest(KRD, 6, 2) + self.rest(VRD, 8, 2)

    def hload(self, m):
        pos = 8192*m if m < 14 else 8192*(m - 14) + 4096
        adv = pos - self.rowpos["h"]
        self.rowpos["h"] = pos
        dst = XB + 8*m
        return ([f"s_add_u32 {sHL}, {sHL}, {adv & 0xffffffff}"] if adv else []) + [
            I(f"buffer_load_dwordx4 {vr(dst+4*b)}, v{HOF+b}, {WS}, {sHL} offen sc1", tag=f"hl{m}" if b else None) for b in range(2)]

    ORDER = [0, 8, 1, 2, 3, 4, 5, 6, 7]

    def kreads(self, tiles):
        return [I(f"ds_read_b128 {ar(KREG[i]+4*ks)}, v{KRD+ks} offset:{2048*i+1024*ks}", tag=f"kr{i}" if ks else None)
                for i in tiles for ks in range(2)]

    def tail_scalars(self):
        return ["s_mov_b32 s12, s28", "s_mov_b32 s13, s29", f"s_mov_b32 s14, {448*896}",
                "s_mov_b32 s16, s30", "s_mov_b32 s17, s31", "s_mov_b32 s18, 1835008",
                f"s_lshr_b32 s69, {sW4k}, 12",
                f"s_mul_i32 {sWO}, s69, {112*896}", f"s_lshl_b32 s70, {sCT}, 7", f"s_add_u32 {sWO}, {sWO}, s70",
                f"s_lshl_b32 {sOL}, {sRT}, 16", "s_lshl_b32 s71, s69, 13", f"s_add_u32 {sOL}, {sOL}, s71", f"s_add_u32 {sOL}, {sOL}, {OB}",
                "s_and_b32 s71, s69, 1", f"s_lshl_b32 s72, {sRT}, 1", "s_add_u32 s72, s72, s71", f"s_mul_i32 {sXO}, s72, 28672",
                f"s_add_u32 {sXO}, {sXO}, s70", "s_lshr_b32 s72, s69, 1", "s_lshl_b32 s72, s72, 6", f"s_add_u32 {sXO}, {sXO}, s72",
                "s_lshl_b32 s72, s69, 2", f"s_lshl_b32 {sNO}, 0x000f000f, s72", "s_lshl_b32 s71, s71, 15"]

    def gemm1(self, q, st, S):
        p = "Q" if q else "G"
        P = self.par
        tl = Timeline()
        first = []
        for G, fr in enumerate(S):
            for f, (acc, z, j, _, _) in enumerate(fr):
                g = tl.add(f"{MF} {acc}, {ar(ABUF+16*(G % 3)+4*f)}, {vr(XB+4*j)}, {'0' if z else acc}")
                if f == 0:
                    first.append(g)
        NS = len(S)
        first.append(len(tl.m))
        F = lambda G, k=0: first[G] + k
        if not q:
            bars = {2: "K1", 6: "K2", 10: "A2", 24: "A6", 40: "B2", 52: "B4", 54: "B6", 68: None}
        else:
            bars = {2: "A1", 6: "A2", 10: "A4", 18: "A6", 26: "B2", 38: "B6"}
        bg = {}
        for G in range(NS):
            g0, w = first[G], first[G+1] - first[G]
            tl.pin(g0, [WAIT(lg=f"R{G}")], "pre")
            if self.lz and G in range(*self.lz):
                tl.pin(g0, self.lazy(f"s{G}"), "pre")
            elif self.lz and self.lazy_open and G == NS - 1:
                tl.pin(g0, self.lazy(None), "pre")
            if G in bars:
                pre, post = [], []
                if self.prof and not self.lz:
                    pre, post = ["s_memtime s[2:3]"], [f"v_writelane_b32 v21, s2, {self.nstamp}"]
                    self.nstamp += 1
                    self.names.append(f"b{G}")
                tl.pin(g0+1, pre + [WAIT(vm=bars[G], lg=0), "s_barrier"] + post)
                bg[G] = g0 + 1
            if G + 2 < NS:
                rd = self.step_reads(S, G+2)
                if w == 4:
                    cnt = (0, 2, 3, 3) if G in bars else (2, 2, 2, 2)
                else:
                    cnt = (0, 4, 4) if G in bars else (3, 3, 2)
                k = 0
                for gg, c in enumerate(cnt):
                    tl.pin(g0+gg, rd[k:k+c], "mem")
                    k += c
                assert k >= len(rd)
        last = len(tl.m) - 1
        post = self.rest(30, 15) + [f"v_mov_b32 {vOne}, 1"]
        dbgload = f"global_load_dwordx4 v[208:211], v20, {DBG} sc1"
        dbgcmp = ["v_and_b32 v208, v208, v209", "v_and_b32 v210, v210, v211", "v_and_b32 v208, v208, v210", "v_cmp_ne_u32 vcc, 1, v208", "s_cmp_lg_u64 vcc, 0"]
        dbg = [Group(["v_mov_b32 v20, 0", I(dbgload, tag="dbg")])]
        dbgchk = [WAIT(vm="dbg"), self.check("dbg"+p, dbgload, dbgcmp)]
        fill = self.fill
        def centering(dl):
            s = []
            for j in range(2, 28):
                if j >= 24:
                    k = len(fill) - 8*(27 - j)
                    s += fill[:k]
                    del fill[:k]
                s += self.center(j) + [By(dl(j))]
            return s
        if not q:
            p0 = self.pass1_mfma(tl)
            end = len(tl.m) - 1
            slot = dict(zip(range(20), (0, 1, 2, 3, 4, 0, 1, 2, 3, 4, 0, 1, 2, 5, 3, 4, 0, 1, 2, 5)))
            sl = lambda k: ([WAIT(lg=f"rd{PRE[max(i for i in range(k) if slot[i] == slot[k])]}")] if slot[k] in [slot[i] for i in range(k)] else []) + \
                self.slabdma(PRE[k], sW4k, PSLOT[slot[k]])
            def rd(k, G):
                tl.pin(F(G), [WAIT(vm=f"sl{PRE[k]}")], "pre")
                return [At(F(G))] + self.slab_reads(ADK, PSLOT[slot[k]], PRE[k])
            V = (st["A1"] if "A1" not in self.prow else []) + [At(bg[2])] + st["K3"] + sum((st[f"A{k}"] for k in range(2, 7)), [])
            V += sl(0) + sl(1) + sl(2) + [At(bg[10])] + sl(3) + sl(4) + dbg
            V += rd(0, 15) + rd(1, 16) + sl(5) + rd(2, 17) + sl(6) + rd(3, 18) + sl(7) + rd(4, 19)
            V += self.qkv_store(TMP, sKV, 0, "kv0") + self.qkv_store(TMP+16, sKV, 2048, "kv1")
            V += sl(8) + rd(5, 22) + sl(9) + rd(6, 23) + sl(10) + [At(bg[24])] + st["B0"] + rd(7, 26) + st["B1"]
            V += [At(F(P.get("fkv", 28)))] + self.publish(0, "kv1b") + rd(8, 29) + st["B2"] + rd(9, 30) + sl(11) + rd(10, 31) + sl(12) + sl(13) + sl(14) + sl(15) + sl(16)
            V += rd(11, 36) + rd(12, 37) + sl(17) + rd(13, 38) + sl(18) + sl(19)
            V += [At(bg[40])] + st["B3"] + st["B4"] + [I(self.POLLKV, tag="pkv")] + rd(14, 44) + st["B5"] + rd(15, 46) + st["B6"]
            V += rd(16, 48) + sum((self.hstore(HPA+4*t, t, f"hA{t}") for t in range(4)), []) + [f"s_add_u32 {sH}, {sH}, 4096"]
            V += rd(17, 49) + rd(18, 50) + rd(19, 51) + [At(F(51, 3)), WAIT(vm="pkv"), self.check("kv"+p, self.POLLKV, self.CMPKV), By(bg[52] - 1)]
            nw = P.get("nw", 4)
            V += [At(bg[52])] + self.kv_all() + [I(self.POLLKV, tag="pq"), At(F(P.get("fha", 58)))] + self.publish(1, "hA3")
            V += sum((self.bigslab(20+k) for k in range(nw)), [])
            V += [At(F(P.get("cq", 63))), WAIT(vm="pq"), self.check("q"+p, self.POLLKV, self.CMPQ)] + self.qload()
            V += [At(F(P.get("pha", 64), 2)), I(self.POLLH, tag="ph"), At(F(66))] + self.ones() + self.hstore(ACCB[0], 0, "hB0") + [At(F(67, 2))] + self.hstore(ACCB[1], 1, "hB1")
            V += [At(bg[68])] + self.kreads((0, 8, 1, 2, 7)) + [At(F(69))] + self.kreads((5, 6))
            V += [At(F(69, 2)), WAIT(vm="ph"), self.check("ha"+p, self.POLLH, self.CMPHA)] + self.hload(0) + [At(last)] + self.kreads((3, 4))
            V += sum((self.hload(m) for m in (1, 2, 3, 4, 6)), []) + [At(p0+10)] + self.hstore(HPB, 2, "hB2") + self.hstore(HPB+4, 3, "hB3")
            V += sum((self.hload(m) for m in (7, 8)), [])
            self.side = sum((self.hload(m) for m in (5, 9, 10, 11, 12, 13)), []) + sum((self.bigslab(m) for m in range(20+nw, 28+P.get("nwo", 2))), [])
            self.later = list(range(28+P.get("nwo", 2), 34))
            w = tl.vflow(V, 0, sp=lambda g: P.get("sp0", 16)/10 if g < F(14) else (2.0 if g < last else 1.0), dsper=4)
            self.log.append("G mem placement: " + " ".join(f"{k}@{(v-0)/4:.2f}" for k, v in w.items()))
            E = [("center", centering(lambda j: F(j//2) - 2 + 2*(j & 1)), 0, F(14)),
                 ("post", post + [f"v_add_u32 v{ADG2+t}, {2*WREG}, v{ADG+t}" for t in range(4)], 0, F(14) - 1),
                 ("adk", [f"s_sub_u32 s1, {sW4k}, {sWB}"] + [f"v_add_u32 v{ADK+k}, s1, v{ADW+k}" for k in range(2)], F(12), F(15) - 1),
                 ("epiK", self.epi_qkv(0, TMP, False) + [By(w["kv0a"] - 1)] + self.epi_qkv(16, TMP+16, False), F(14, 2), w["kv1a"] - 1),
                 ("dbg", dbgchk, F(22), F(27)),
                 ("masks", self.ptrmove + [By(F(46))] + self.masks(), F(14), F(66)),
                 ("hof", self.rest(HOF, 13, 2), F(14), F(68)),
                 ("kvo", self.rest(KVO, 0, 6), w["B6"] + 1, w["Ks0"] - 1),
                 ("tails", self.tail_scalars(), max(w["B6"] + 1, F(47)), F(68)),
                 ("attr", self.att_restore(), w["Vt2"] + 1, F(66) - 1),
                 ("qmask", self.qmask(), F(68), last)]
            for t in range(3):
                E += [(f"epiA{t}", self.epi_gu(ACCA[t], HPA+4*t), F(30+4*t, 2), F(42) + t - 1)]
            E += [("epiA3", self.epi_gu(ACCA[3], HPA+12) + [By(w["hA3"] - 1)] + self.rest(EM, 16, 8), F(42, 2), bg[68] - 1)]
            E += [("epiB0", self.epi_gu(ACCB[0], ACCB[0]), F(58, 2), w["hB0"] - 1), ("epiB1", self.epi_gu(ACCB[1], ACCB[1]), F(62, 2), w["hB1"] - 1),
                  ("epiB2", self.epi_gu(ACCB[2], HPB), F(66, 2), p0 + 7), ("epiB3", self.epi_gu(ACCB[3], HPB+4), last + 2, w["hB3"] - 1),
                  ("max", self.pass1_valu(p0), p0, end)]
            tl.edf(E)
            first.append(len(tl.m))
        else:
            V = sum((st[f"A{k}"] for k in range(4, 7)), []) + sum((st[f"B{k}"] for k in range(3)), [])
            V += [At(bg[2])] + st["B3"] + [At(bg[6])] + st["B4"] + [At(bg[10])] + st["B5"] + [At(bg[18])] + st["B6"] + [At(F(26))] + dbg
            qs = lambda t: self.qkv_store(TMP+16*(t & 1), sKV, 2048*(t & 1), f"q{t}")
            V += [At(F(33))] + qs(0) + [At(F(36))] + qs(1) + [f"s_add_u32 {sKV}, {sKV}, 4096", At(F(40))] + qs(2) + [At(F(43))] + qs(3)
            V += [I(self.POLLKV, tag="pkv"), At(F(47, 2))] + self.qkv_store(ACCB[0], "s14", 0, "q4") + [At(last - 2)] + self.qkv_store(ACCB[1], "s14", 2048, "q5")
            w = tl.vflow(V, 0)
            self.log.append("Q mem placement: " + " ".join(f"{k}@{v}" for k, v in w.items()))
            sA = []
            for t in range(4):
                sA += ([At(w[f"q{t-2}b"] + 1)] if t >= 2 else []) + self.epi_qkv(16*t, TMP+16*(t & 1), True) + [By(w[f"q{t}a"] - 1)]
            E = [("center", centering(lambda j: F(j) - 2), 0, F(28)),
                 ("post", post + self.masks() + [At(F(28))] + self.rest(EM, 16, 8), F(2), last),
                 ("dbg", dbgchk, F(31), F(40)),
                 ("epiA", sA, F(28, 2), last),
                 ("epiB0", self.epi_qkv(ACCB[0], None, True), F(44, 2), w["q4a"] - 1),
                 ("epiB1", self.epi_qkv(ACCB[1], None, True), F(48, 2), w["q5a"] - 1)]
            tl.edf(E)
        self.log.append(f"{p} gemm1 estimate {tl.estimate()} cycles; per step {tl.profile(first)}\n   slack {tl.slack(first)}")
        o = tl.emit()
        if q:
            o += self.stamp("g1")
            o += L(self.epi_qkv(ACCB[2], None, True) + self.qkv_store(ACCB[2], "s15", 0, "q6") + self.rest(KVO, 0, 6))
            if "qlate" not in self.exp:
                o += self.publish(0, "q6b") + self.stamp("qpub")
            o += L([WAIT(vm="pkv"), self.check("kv"+p, self.POLLKV, self.CMPKV), "s_barrier"] + self.kv_all() + self.att_restore())
            if "qlate" in self.exp:
                o += self.publish(0, "q6b")
            o += L([I(self.POLLKV, tag="pq")] + self.ones() + [WAIT(lg=0), "s_barrier"] + self.kreads(self.ORDER))
            o += L([WAIT(vm="pq"), self.check("q"+p, self.POLLKV, self.CMPQ)] + self.qload() + self.qmask())
            tl = Timeline()
            p0 = self.pass1_mfma(tl)
            tl.edf([("max", self.pass1_valu(p0), p0, len(tl.m) - 1)])
            o += tl.emit()
            self.side = []
        o += self.tail1
        return o

    SB1 = dict(zip(ORDER, (144, 160, 224, 240, 176, 144, 160, 224, 240)))

    def pass1_mfma(self, tl):
        p0 = len(tl.m)
        self.done1 = {}
        for i in self.ORDER:
            b = vr(self.SB1[i], 16)
            g = tl.add(f"{MF} {b}, {ar(KREG[i])}, {vr(QF)}, 0")
            tl.pin(g, [WAIT(lg=f"kr{i}")], "pre")
            self.done1[i] = tl.add(f"{MF} {b}, {ar(KREG[i]+4)}, {vr(QF+4)}, {b}")
        return p0

    @staticmethod
    def merge(a, b):
        return [f"v_cndmask_b32 v{a+r}, v{a+r}, v{b+r}, s[{MASK0+2*r}:{MASK0+2*r+1}]" for r in range(16)]

    def pass1_valu(self, p0):
        buf, done = self.SB1, self.done1
        def mx(b, init):
            s = []
            for k in range(8):
                m = 2 + (k & 1)
                s.append(f"v_max3_f32 v{m}, v{b+2*k}, v{b+2*k+1}, v{b+2*k if init and k < 2 else m}")
            return s
        s = [At(done[8]+2)] + self.merge(buf[0], buf[8]) + mx(buf[0], True) + [By(p0+9)]
        for i in (1, 2, 3, 4, 5):
            s += [At(done[i]+2)] + mx(buf[i], False) + ([By(p0+11+2*i)] if i < 3 else [])
        t = mx(buf[6], False) + mx(buf[7], False)
        t += ["v_max_f32 v2, v2, v3", "v_mov_b32 v3, v2", "v_permlane32_swap_b32 v2, v3", "v_max_f32 v2, v2, v3"]
        t += [f"v_sub_f32 v{NEGB+r}, 0, v2" for r in range(16)]
        self.tail1 = L(t)
        return s

    def pass2(self, q):
        o = self.stamp("p1")
        NEG, O = vr(NEGB, 16), vr(240, 16)
        sbuf = {0: 144, 8: 160, 1: 176, 2: 160, 3: 144, 4: 176, 5: 160, 6: 144, 7: 176}
        Sm = lambda i: [f"{MF} {vr(sbuf[i], 16)}, {ar(KREG[i])}, {vr(QF)}, {NEG}",
                        f"{MF} {vr(sbuf[i], 16)}, {ar(KREG[i]+4)}, {vr(QF+4)}, {vr(sbuf[i], 16)}"]
        Vr = lambda i: [I(f"ds_read_b64_tr_b16 {ar(KREG[i]+4*s_+2*mm, 2)}, v{VRD+mm} offset:{2048*i+256*s_}", tag=f"vr{i}" if s_+mm == 2 else None)
                        for s_ in range(2) for mm in range(2)]
        PV = lambda i, P, z=False: [Group([WAIT(lg="vr8" if z else f"vr{i}"), f"{MF} {O}, {ar(KREG[i])}, {vr(P)}, {'0' if z else O}"]),
                                    f"{MF} {O}, {ar(KREG[i]+4)}, {vr(P+4)}, {O}"]
        side, cur = [], []
        for x in L(self.side):
            cur.append(x)
            if x.kind == "vmem":
                side.append(cur)
                cur = []
        assert not cur
        tk = lambda: side.pop(0) if side else []
        def body(b, P, ms, rds):
            s = []
            ms, rds = list(ms), list(rds)
            for k in range(4):
                s += [f"v_exp_f32 v{b+4*k+e}, v{b+4*k+e}" for e in range(4)]
                if k:
                    s += [f"v_cvt_pk_bf16_f32 v{P+2*k-2+e}, v{b+4*k-4+2*e}, v{b+4*k-3+2*e}" for e in range(2)]
                if ms:
                    s += [ms.pop(0)]
                    if rds:
                        s += [rds.pop(0)]
                if k != 2:
                    s += tk()
            s += rds
            s += [f"v_cvt_pk_bf16_f32 v{P+6+e}, v{b+12+2*e}, v{b+13+2*e}" for e in range(2)]
            return s
        o += Sm(0) + Vr(0) + tk() + Sm(8) + Vr(8) + Sm(1) + Vr(1) + tk()
        o += self.merge(144, 160)
        o += body(144, 224, Sm(2), Vr(2))
        o += [f"v_and_b32 v{232+k}, v{EM+k}, v{224+k}" for k in range(8)] + [f"v_xor_b32 v{224+k}, v{232+k}, v{224+k}" for k in range(8)]
        PB = {1: EM, 2: 224, 3: EM, 4: 224, 5: EM, 6: 224, 7: EM}
        o += body(176, PB[1], PV(0, 224, True) + PV(8, 232), [])
        for i in range(2, 8):
            if not q and i == self.par.get("fhb", 3):
                o += self.publish(2, "hB3")
            ms = (Sm(i+1) if i < 7 else []) + PV(i-1, PB[i-1])
            o += body(sbuf[i], PB[i], ms, Vr(i+1) if i < 7 else [])
        o += sum(side, [])
        self.pv7 = PV(7, PB[7])
        f = [f"v_cndmask_b32 v2, 0, v240, {MASKA}", f"v_cndmask_b32 v2, v2, v252, {MASKB}", "v_mov_b32 v3, v2", "s_nop 0",
             "v_permlane32_swap_b32 v2, v3", "v_add_f32 v2, v2, v3", "v_rcp_f32 v2, v2", "s_nop 0",
             f"v_mul_f32 v2, {f32(LOG2E**-2)}, v2", f"v_cndmask_b32 v3, v2, 0, {MASKA}", f"v_cndmask_b32 v4, v2, 0, {MASKB}"]
        for r in (4, 5, 6, 7, 8, 9, 10, 11, 0, 1, 2, 3, 12, 13, 14, 15):
            f += [f"v_mul_f32 v{240+r}, v{3 if r < 4 else 4 if r >= 12 else 2}, v{240+r}"]
        f += [f"v_cvt_pk_bf16_f32 v{232+k}, v{240+2*k}, v{241+2*k}" for k in range(8)]
        self.ofin = [x for x in f if x != "s_nop 0"]
        self.ost = [I(f"buffer_store_dwordx4 {vr(232+4*m)}, {vL16}, {WS}, {sOst} offen offset:{1024*m} sc1", tag=f"o{m}") for m in range(2)]
        return L(o) + self.stamp("p2")

    def phase4(self):
        P = self.par
        tl = Timeline()
        tl.add(self.pv7[0].items[1])
        tl.pin(0, [self.pv7[0].items[0]], "pre")
        pv = tl.add(self.pv7[1])
        OR_ = 32
        op = lambda k, sg: (ar((BACC if k < 28 else SACC)[sg], 16), ar(slabreg(k)+4*(sg >> 1)), vr((XB+8*k if k < 28 else OR_+8*(k-28)) + 4*(sg & 1)))
        K, fin = [], {}
        def add(k, sg):
            d, a, b = op(k, sg)
            return tl.add(f"{MF} {d}, {a}, {b}, {'0' if k in (0, 28) else d}")
        for a, b in ((0, 28), (28, 36)):
            for k in range(a, b - 3):
                K.append([add(k, sg) for sg in range(4)][0])
            g0 = len(tl.m)
            for sg in (1, 2, 3, 0):
                for k in range(b - 3, b):
                    fin[a, sg] = add(k, sg)
            K += [g0, g0 + 4, g0 + 8]
        last = len(tl.m) - 1
        K.append(last + 1)
        vtag = lambda k: f"hl{k}" if k < 28 else f"ol{k-28}"
        for k in range(36):
            tm = k in (25, 26, 27, 33, 34, 35)
            g = (K[25] + k - 25 if k < 28 else K[33] + k - 33) if tm else K[k]
            tl.pin(g, [WAIT(vm=vtag(k), lg=f"rd{k}")], "pre")
        if self.prof:
            for nm, g in (("k1", K[1]), ("k8", K[8]), ("k14", K[14]), ("k21", K[21]), ("k28", K[28])):
                tl.pin(g, self.stamp(nm), "pre")
        kb = P.get("kbar", 22)
        tl.pin(K[kb], ["s_barrier"])
        rdk = lambda m: m - 19 if m < 22 else m - 12
        for m in range(20, 36):
            tl.pin(K[rdk(m)], [WAIT(vm=f"sl{m}")], "pre")
            for k, x in enumerate(self.slab_reads(ADW, 2048*slabpos(m), m)):
                tl.pin(K[rdk(m)] + k, [x], "mem")
        vRW, vRR_, vSW, vSR, vOut, vO = 24, 5, 6, 11, 12, 9
        XR, XF = 96, 112
        pollO = f"buffer_load_dword v29, {vPB}, {WS}, 0 offen offset:128 sc1"
        cmpO = ["v_cmp_eq_u32 vcc, 1, v29", f"s_andn2_b32 vcc_lo, {sNO}, vcc_lo"]
        lat = [self.bigslab(m) for m in self.later]
        V = [I(self.POLLH, tag="phb")] + sum(lat[:2], []) + [At(K[2])] + self.ost + sum(lat[2:], [])
        V += [At(K[P.get("chb", 4)]), WAIT(vm="phb"), self.check("hb", self.POLLH, self.CMPHB)]
        fo = P.get("fo", 5)
        for m in range(14, 28):
            V += self.hload(m)
            if m == 14 + fo:
                V += self.publish(3, "o1")
            if m == 14 + P.get("po", 11):
                V += [I(pollO, tag="po")]
        V += [WAIT(lg="rd21")] + self.bigslab(34) + self.bigslab(35)
        V += [I(f"buffer_load_dwordx4 {vr(XR+4*k)}, v{vOut}, {X}, {sXO} offen offset:{32*k}", tag=f"xres{k}") for k in range(2)]
        V += [WAIT(vm="po"), self.check("o", pollO, cmpO)]
        for k in range(8):
            V += [I(f"buffer_load_dwordx4 {vr(OR_+8*k+4*b)}, v{vO+b}, {WS}, {sOL} offen offset:{1024*(k & 3)} sc1", tag=f"ol{k}" if b else None) for b in range(2)]
            if k == 3:
                V += [f"s_add_u32 {sOL}, {sOL}, 4096"]
        w = tl.vflow(V, 0)
        self.log.append("phase4 mem placement: " + " ".join(f"{k}@{(v-2)/4:.2f}" for k, v in w.items()))
        t = [f"v_add_u32 v{vO}, s71, {vL16}", f"v_xor_b32 v{vO+1}, 0x8000, v{vO}",
             "v_and_b32 v13, 31, v0", "v_mul_u32_u24 v13, 896, v13", "v_lshrrev_b32 v12, 5, v0", f"v_lshl_add_u32 v{vOut}, v12, 4, v13"]
        for sg in range(4):
            t += [f"s_xor_b32 s72, s69, {sg}", "s_mul_i32 s73, s72, 12288", f"s_mul_i32 s74, s72, {WREG}", f"s_add_u32 s74, s74, {BIG+4096}",
                  f"v_add_u32 v{vRW+sg-1 if sg else vRR_}, s73, {vL16}", f"v_add_u32 v{vSW+sg-1 if sg else vSR}, s74, {vL16}"]
        xr = [WAIT(vm="xres1")] + [f"v_permlane32_swap_b32 v{XR+4*k+e}, v{XR+4*k+e+2}" for k in range(2) for e in range(2)]
        for k in range(8):
            xr += [f"v_lshlrev_b32 v{XF+2*k}, 16, v{XR+k}", f"v_and_b32 v{XF+2*k+1}, 0xffff0000, v{XR+k}"]
        wr = lambda acc, vw, sg: [f"ds_write_b128 v{vw+sg-1}, {ar(acc[sg]+4*k)} offset:{4096*(sg-1)+1024*k}" for k in range(4)]
        own = lambda acc, dst: [f"v_accvgpr_read_b32 v{dst+r}, a{acc[0]+r}" for r in range(16)]
        rds = lambda vrd, dst, tag: [I(f"ds_read_b128 {vr(dst+16+16*sg+4*k)}, v{vrd} offset:{4096*sg+1024*k}", tag=f"{tag}{k}" if sg == 2 else None)
                                     for k in range(4) for sg in range(3)]
        def adds(dst, k, tag):
            s = [WAIT(lg=f"{tag}{k}")]
            for r in range(4*k, 4*k+4):
                s += [f"v_add_f32 v{dst+16+r}, v{dst+16+r}, v{dst+32+r}", f"v_add_f32 v{dst+r}, v{dst+r}, v{dst+48+r}"]
            return s + [f"v_add_f32 v{dst+r}, v{dst+r}, v{dst+16+r}" for r in range(4*k, 4*k+4)]
        Bv, Sv = 144, 32
        T = Bv + 16
        def silu(k):
            r = range(4*k, 4*k+4)
            return ([f"v_exp_f32 v{T+e}, -v{Bv+e}" for e in r] + [f"v_add_f32 v{T+e}, 1.0, v{T+e}" for e in r]
                    + [f"v_rcp_f32 v{T+e}, v{T+e}" for e in r] + [f"v_mul_f32 v{Bv+e}, v{Bv+e}, v{T+e}" for e in r])
        br = []
        for sg in (1, 2, 3):
            br += [At(fin[0, sg] + 3)] + wr(BACC, vRW, sg)
        br += [At(fin[0, 0] + 3)] + own(BACC, Bv) + [Group([WAIT(lg=0), "s_barrier"])] + rds(vRR_, Bv, "br")
        nsil = P.get("nsil", 2)
        for k in range(4):
            br += adds(Bv, k, "br")
        for k in range(nsil):
            br += silu(k)
        sw = []
        for sg in (1, 2):
            sw += [At(fin[28, sg] + 3)] + wr(SACC, vSW, sg)
        tl.edf([("ofin", self.ofin, pv + 3, w["o0"] - 1), ("addr", t, K[3], K[13]), ("xres", xr, w["xres1"] + 20, K[28]),
                ("bred", br, K[25], last), ("swr", sw, K[33], last)])
        self.log.append(f"phase4 estimate {tl.estimate()} per kstep {tl.profile(K)}")
        o = tl.emit()
        o += self.stamp("k36")
        rest = sum((silu(k) for k in range(nsil, 4)), [])
        h = len(rest)//2
        o += wr(SACC, vSW, 3) + own(SACC, Sv) + rest[:h] + [WAIT(lg=0), "s_barrier"] + rds(vSR, Sv, "sr") + rest[h:]
        for k in range(4):
            o += adds(Sv, k, "sr") + [f"v_fma_f32 v{Sv+r}, v{Sv+r}, v{Bv+r}, v{XF+r}" for r in range(4*k, 4*k+4)]
            if k & 1:
                n = Sv + 8*(k >> 1)
                o += [f"v_cvt_pk_bf16_f32 v{n+e}, v{n+2*e}, v{n+2*e+1}" for e in range(4)]
                o += ["s_nop 0", f"v_permlane32_swap_b32 v{n}, v{n+2}", f"v_permlane32_swap_b32 v{n+1}, v{n+3}",
                      f"buffer_store_dwordx4 {vr(n)}, v{vOut}, {OUT}, {sXO} offen offset:{32*(k >> 1)}{self.oflag}"]
        return L(o)

    def profile_dump(self):
        if not self.prof:
            return []
        o = self.stamp("end")
        return o + L([
            "s_memrealtime s[2:3]", WAIT(lg=0), "v_writelane_b32 v21, s2, 61",
            "s_getreg_b32 s2, hwreg(HW_REG_XCC_ID)", "v_writelane_b32 v21, s2, 60", f"s_mov_b32 s2, {self.nstamp}",
            "v_writelane_b32 v21, s2, 59", f"s_lshl_b32 s2, {sFlag}, 6", f"s_add_u32 s2, s2, {PROF}", "v_lshlrev_b32 v20, 2, v0",
            f"buffer_store_dword v21, v20, {WS}, s2 offen"])

    def path(self, q):
        st, S = self.stages(q), self.steps(q)
        self.nstamp = 0
        self.names = []
        self.finelist = []
        self.rowpos = {"w2": 0, "wo": 0, "h": 0}
        o = self.prologue(q, st, S)
        o += self.stamp("pro") + L(sum(self.finelist, [])) + self.gemm1(q, st, S)
        o += self.pass2(q)
        if q or self.stop == "att":
            o += L(self.pv7 + self.ofin + self.ost) + self.publish(3, "o1")
        else:
            o += self.phase4()
        o += self.profile_dump() + L(["s_endpgm"])
        if self.prof:
            self.log.append(("Q" if q else "G") + " stamps: " + " ".join(self.names))
        return o

    def build(self):
        ent = self.entry()
        text = []
        notes = []
        for q in (False, True):
            log = []
            code, auto, nops = finalize(ent + self.path(q), log, merge=True)
            notes.append("; stamps " + ("Q" if q else "G") + ": " + " ".join(self.names))
            self.log += [f"path {'Q' if q else 'G'}: {len(code)} instrs, {auto} auto waits, {nops} nop states"] + log
            if q:
                k = next(i for i, x in enumerate(code) if x.text == "L_Q:")
                code = code[k:]
            if "al" in self.exp:
                code = ([I(".p2align 3")] if q else []) + align(code, self.log)
            text += [x.text for x in code]
        text += [x if isinstance(x, str) else x.text for x in self.slow] + ["L_exit:"]
        head = open(REF).read().split("; @launch")[0]
        body = "\n".join(t if t.endswith(":") else "    " + t for t in text)
        return (head + "; @launch grid=(256,1,1) block=(256,1,1) lds=163840\n" + ("\n".join(notes) + "\n" if self.prof else "") +
                f'.amdgcn_target "amdgcn-amd-amdhsa--gfx950"\n.text\n.globl {KNAME}\n.p2align 8\n.type {KNAME},@function\n{KNAME}:\n'
                f"{body}\n    s_endpgm\n"
                f'.section .rodata,"a"\n.p2align 6\n.amdhsa_kernel {KNAME}\n  .amdhsa_next_free_vgpr 512\n  .amdhsa_next_free_sgpr 102\n'
                "  .amdhsa_accum_offset 256\n  .amdhsa_group_segment_fixed_size 0\n  .amdhsa_kernarg_size 80\n"
                "  .amdhsa_user_sgpr_count 2\n  .amdhsa_user_sgpr_kernarg_segment_ptr 1\n  .amdhsa_system_sgpr_workgroup_id_x 1\n"
                ".end_amdhsa_kernel\n")


if __name__ == "__main__":
    import argparse
    ap = argparse.ArgumentParser()
    ap.add_argument("out")
    ap.add_argument("--stop")
    ap.add_argument("--prof", action="store_true")
    ap.add_argument("-v", action="store_true")
    ap.add_argument("--exp", default="")
    a = ap.parse_args()
    g = Gen(a.stop, a.prof, tuple(a.exp.split(',')))
    open(a.out, "w").write(g.build())
    for l in g.log:
        if a.v or not l.startswith(("nop", "auto")):
            print(l)
```
